```python
import torch

def _softmax(x, axis=-1):
    return torch.softmax(x, dim=axis)
def _gelu(x):
    return torch.nn.functional.gelu(x, approximate="tanh")
def _silu(x):
    return torch.nn.functional.silu(x)
def _sigmoid(x):
    return torch.sigmoid(x)
def _layernorm(x, axis=-1, eps=1e-5):
    m = x.mean(dim=axis, keepdim=True)
    v = x.var(dim=axis, keepdim=True, unbiased=False)
    return (x - m) / torch.sqrt(v + eps)
def _scatter_add(tgt, idx, src, axis=0):
    return tgt.clone().index_add_(axis, idx, src)
def _segment_sum(src, seg, n):
    out = torch.zeros((n,) + src.shape[1:], dtype=src.dtype)
    return out.index_add_(0, seg, src)
def _pad(x, pw):
    flat = tuple(v for pair in reversed(pw) for v in pair)
    return torch.nn.functional.pad(x, flat)

kernel_name = 'standalone__edge_featured_mpnn_gatedgcn__graph'

def setup_inputs():

    _w = (lambda a: (lambda t: t.to(torch.bfloat16) if t.is_floating_point() else t)(torch.as_tensor(a)))
    N, deg, D, De = 10000, 16, 256, max(16, 1)
    E = N * deg
    return {
        "x": _w((lambda *s: torch.randn(*s, dtype=torch.bfloat16) * 0.4)(N, D)),
        "e_attr": _w((lambda *s: torch.randn(*s, dtype=torch.bfloat16) * 0.4)(E, De)),
        "src": _w((lambda lo, hi, *s: torch.randint(lo, hi, s))(0, N, E).to(torch.int64)),
        "dst": _w((lambda lo, hi, *s: torch.randint(lo, hi, s))(0, N, E).to(torch.int64)),
        "w_a": _w((lambda *s: torch.randn(*s, dtype=torch.bfloat16) * 0.4)(D, D)),
        "w_b": _w((lambda *s: torch.randn(*s, dtype=torch.bfloat16) * 0.4)(D, D)),
        "w_c": _w((lambda *s: torch.randn(*s, dtype=torch.bfloat16) * 0.4)(De, D)),
        "w_u": _w((lambda *s: torch.randn(*s, dtype=torch.bfloat16) * 0.05)(D, D)),
        "w_v": _w((lambda *s: torch.randn(*s, dtype=torch.bfloat16) * 0.05)(D, D)),
    }

def reference(x, e_attr, src, dst, w_a, w_b, w_c, w_u, w_v):
    N, D = x.shape
    hv = x @ w_v
    g = x[dst] @ w_a + x[src] @ w_b + e_attr @ w_c
    eta = _sigmoid(g)
    denom = _segment_sum(eta, dst, N) + 1e-6
    eta_n = eta / denom[dst]
    agg = _segment_sum(eta_n * hv[src], dst, N)
    z = x @ w_u + agg
    relu_z = torch.where(z > 0, z, 0 * z)
    return x + relu_z
```

```python
import struct, math
def f2u(f): return struct.unpack('<I',struct.pack('<f',f))[0]

N=10000; E=160000; D=256
NB=64; BN=157; C=64; CE=2500
BV_SLICE=10001*256; AU_SLICE=10000*256
WS_BV=0
WS_AU=WS_BV+4*BV_SLICE
WS_REC=WS_AU+4*AU_SLICE
WS_EAP=WS_REC+E*4
WS_OFF=WS_EAP+E*32
WS_END=WS_OFF+NB*C*4
KAPPA=f2u(-math.log2(math.e))
OFFLOG=48
CSMALL=f2u(2.0**-OFFLOG)
EPSS=f2u(1e-6*2.0**OFFLOG)

class Em:
    def __init__(self): self.l=[]
    def __call__(self,s): self.l.append('    '+s)
    def lab(self,s): self.l.append(s+':')
    def c(self,s): self.l.append('    ; '+s)
    def raw(self,s): self.l.append(s)
    def text(self): return '\n'.join(self.l)+'\n'

def vr(a,n=1): return f'v{a}' if n==1 else f'v[{a}:{a+n-1}]'
def sr(a,n=1): return f's{a}' if n==1 else f's[{a}:{a+n-1}]'

def srd(e, s, lo, hi, num):
    if lo!=f's{s}': e(f's_mov_b32 s{s}, {lo}')
    e(f's_and_b32 s{s+1}, {hi}, 0xffff')
    e(f's_mov_b32 s{s+2}, {num}')
    e(f's_mov_b32 s{s+3}, 0x20000')

def scan64(e, v):
    for sh in (1,2,4,8):
        e('s_nop 1')
        e(f'v_add_u32_dpp v{v}, v{v}, v{v} row_shr:{sh} row_mask:0xf bank_mask:0xf bound_ctrl:0')
    e('s_nop 1')
    e(f'v_add_u32_dpp v{v}, v{v}, v{v} row_bcast:15 row_mask:0xa bank_mask:0xf')
    e('s_nop 1')
    e(f'v_add_u32_dpp v{v}, v{v}, v{v} row_bcast:31 row_mask:0xc bank_mask:0xf')
    e('s_nop 1')

def kdesc(name, vgpr, sgpr):
    acc=((vgpr+3)//4)*4
    return f'''.p2align 6
.amdhsa_kernel {name}
  .amdhsa_next_free_vgpr {vgpr}
  .amdhsa_next_free_sgpr {sgpr}
  .amdhsa_accum_offset {acc}
  .amdhsa_group_segment_fixed_size 0
  .amdhsa_kernarg_size 96
  .amdhsa_user_sgpr_count 2
  .amdhsa_user_sgpr_kernarg_segment_ptr 1
  .amdhsa_system_sgpr_workgroup_id_x 1
.end_amdhsa_kernel
'''
```

```python
from common import *

K1_LDS = 131072
NSORT = 64

def gen_k1(e, name):
    e.raw(f'.globl {name}')
    e.raw('.p2align 8')
    e.raw(f'.type {name},@function')
    e.lab(name)
    e('s_cmp_ge_u32 s2, 256')
    e('s_cbranch_scc1 K1_END')
    e('s_cmp_lt_u32 s2, 64')
    e('s_cbranch_scc1 K1_SORT')
    gemm(e)
    e('s_branch K1_END')
    e.lab('K1_SORT')
    sort(e)
    e.lab('K1_END')
    e('s_endpgm')

def gemm(e):
    e.c('================= GEMM role =================')
    e('s_load_dwordx2 s[24:25], s[0:1], 0')
    e('s_load_dwordx4 s[28:31], s[0:1], 32')
    e('s_load_dwordx4 s[32:35], s[0:1], 56')
    e('s_load_dwordx2 s[26:27], s[0:1], 88')
    e('s_sub_u32 s3, s2, 64')
    e('s_and_b32 s4, s3, 7')
    e('s_lshr_b32 s5, s3, 3')
    e('s_mul_i32 s6, s5, 43')
    e('s_lshr_b32 s6, s6, 7')
    e('s_mul_i32 s7, s6, 3')
    e('s_sub_u32 s7, s5, s7')
    e('s_mul_i32 s4, s4, 3')
    e('s_add_u32 s4, s4, s7')
    e('s_mul_i32 s36, s4, 13')
    e('s_cmp_eq_u32 s4, 23')
    e('s_cselect_b32 s37, 14, 13')
    e('s_lshr_b32 s38, s6, 2')
    e('s_and_b32 s39, s6, 3')
    e('v_and_b32 v1, 63, v0')
    e('v_lshrrev_b32 v2, 6, v0')
    e('s_nop 0')
    e('v_readfirstlane_b32 s40, v2')
    e('s_nop 3')
    e('s_and_b32 s41, s40, 1')
    e('s_lshr_b32 s42, s40, 1')
    e('v_lshrrev_b32 v2, 3, v0')
    e('v_and_b32 v3, 7, v0')
    e('v_lshlrev_b32 v4, 9, v2')
    e('v_lshl_add_u32 v4, v3, 4, v4')
    e('v_lshrrev_b32 v5, 2, v3')
    e('v_lshlrev_b32 v5, 14, v5')
    e('v_lshl_add_u32 v5, v2, 6, v5')
    e('v_and_b32 v3, 3, v3')
    e('v_lshl_add_u32 v5, v3, 4, v5')
    e('v_add_u32 v5, 0x10000, v5')
    e('v_lshrrev_b32 v2, 5, v1')
    e('v_lshlrev_b32 v6, 9, v2')
    e('v_bfe_u32 v3, v1, 2, 2')
    e('v_lshl_add_u32 v6, v3, 6, v6')
    e('v_bfe_u32 v3, v1, 4, 1')
    e('v_lshl_add_u32 v6, v3, 5, v6')
    e('v_and_b32 v3, 3, v1')
    e('v_lshl_add_u32 v6, v3, 3, v6')
    e('s_lshl_b32 s43, s41, 14')
    e('s_add_u32 s43, s43, 0x10000')
    e('v_add_u32 v6, s43, v6')
    e('v_lshrrev_b32 v2, 5, v1')
    e('v_and_b32 v3, 31, v1')
    for a in range(8):
        e(f'v_add_u32 v7, {2*a}, v2')
        e(f'v_xor_b32 v7, v7, v3')
        e(f'v_lshlrev_b32 v7, 4, v7')
        e(f'v_lshl_add_u32 v{8+a}, v2, 9, v7')
    e('v_and_b32 v7, 15, v1')
    e('v_lshlrev_b32 v25, 9, v3')
    e('s_lshl_b32 s43, s42, 14')
    e('v_add_u32 v25, s43, v25')
    for k in range(8):
        e(f'v_add_u32 v26, {2*k}, v2')
        e(f'v_xor_b32 v26, v26, v7')
        e(f'v_lshl_add_u32 v{16+k}, v26, 4, v25')
    e('v_lshlrev_b32 v24, 10, v2')
    e('v_lshl_add_u32 v24, v3, 2, v24')
    e('s_lshl_b32 s43, s41, 7')
    e('v_add_u32 v24, s43, v24')
    e('s_waitcnt lgkmcnt(0)')
    srd(e, 8, 's24', 's25', 5120000)
    e('s_cmp_eq_u32 s38, 0')
    e('s_cselect_b32 s12, s30, s28')
    e('s_cselect_b32 s13, s31, s29')
    e('s_cselect_b32 s16, s34, s32')
    e('s_cselect_b32 s17, s35, s33')
    e('s_and_b32 s13, s13, 0xffff')
    e('s_mov_b32 s14, 131072')
    e('s_mov_b32 s15, 0x20000')
    e('s_and_b32 s17, s17, 0xffff')
    e('s_mov_b32 s18, 131072')
    e('s_mov_b32 s19, 0x20000')
    e(f's_mul_i32 s43, s39, {BV_SLICE}')
    e(f's_mul_i32 s44, s39, {AU_SLICE}')
    e(f's_add_u32 s44, s44, {WS_AU}')
    e('s_cmp_eq_u32 s38, 0')
    e('s_cselect_b32 s43, s43, s44')
    e('s_add_u32 s20, s26, s43')
    e('s_addc_u32 s21, s27, 0')
    e('s_and_b32 s21, s21, 0xffff')
    e(f's_mov_b32 s22, {AU_SLICE}')
    e('s_mov_b32 s23, 0x20000')
    e('s_lshl_b32 s45, s39, 7')
    for a in range(8):
        mu=a>>2
        e(f's_add_u32 s46, s45, {(a&3)*32768}')
        e(f'buffer_load_dwordx4 v[{32+4*a}:{35+4*a}], v4, s[{12+4*mu}:{15+4*mu}], s46 offen')
    e('s_lshl_b32 s47, s42, 14')
    e('s_lshl_b32 s43, s41, 13')
    e('s_add_u32 s47, s47, s43')
    def dma(tile_sgpr, setidx):
        e(f's_lshl_b32 s48, {tile_sgpr}, 14')
        e('s_lshl_b32 s43, s41, 13')
        e('s_add_u32 s48, s48, s43')
        e(f's_add_u32 s49, s47, {setidx*65536}')
        e('s_mov_b32 m0, s49')
        e('s_nop 0')
        for a in range(4):
            e(f'buffer_load_dwordx4 v{8+a}, s[8:11], s48 offen offset:{a*1024} lds')
        e('s_add_u32 s49, s49, 4096')
        e('s_add_u32 s48, s48, 4096')
        e('s_mov_b32 m0, s49')
        e('s_nop 0')
        for a in range(4):
            e(f'buffer_load_dwordx4 v{12+a}, s[8:11], s48 offen offset:{a*1024} lds')
    e('s_add_u32 s50, s36, s42')
    dma('s50', 0)
    e('s_or_b32 s43, s38, s4')
    e('s_or_b32 s43, s43, s40')
    e('s_cmp_lg_u32 s43, 0')
    e('s_cbranch_scc1 K1_NODUMMY')
    e('s_mov_b32 s52, s20')
    e('s_mov_b32 s53, s21')
    e(f's_mov_b32 s54, {BV_SLICE}')
    e('s_mov_b32 s55, 0x20000')
    e('v_lshlrev_b32 v26, 2, v1')
    e('v_mov_b32 v27, 0x7180')
    e(f's_mov_b32 s43, {10000*256}')
    e('buffer_store_dword v27, v26, s[52:55], s43 offen')
    e.lab('K1_NODUMMY')
    e('s_waitcnt vmcnt(0)')
    for a in range(8):
        mu=a>>2
        e(f'ds_write_b128 v5, v[{32+4*a}:{35+4*a}] offset:{mu*32768+(a&3)*4096}')
    e('s_waitcnt lgkmcnt(0)')
    e('s_barrier')
    for mu in range(2):
        for ks in range(16):
            base=128+mu*64+ks*4
            for u in range(2):
                e(f'ds_read_b64_tr_b16 v[{base+2*u}:{base+2*u+1}], v6 offset:{mu*32768+ks*1024+u*256}')
    e('s_waitcnt lgkmcnt(0)')
    e('s_barrier')
    e('s_mov_b32 s56, 0x00800000')
    e('s_mov_b32 s57, 0x80000000')
    e('s_mov_b32 s58, 0x7fff0000')
    for rnd in range(4):
        e.c(f'--- round {rnd}')
        cur=rnd&1; nxt=(rnd+1)&1
        if rnd<3:
            e(f's_add_u32 s51, s42, {4*(rnd+1)}')
            e('s_cmp_ge_u32 s51, s37')
            e(f's_cbranch_scc1 K1_NODMA{rnd}')
            e('s_add_u32 s50, s36, s51')
            dma('s50', nxt)
            e.lab(f'K1_NODMA{rnd}')
        e(f's_add_u32 s51, s42, {4*rnd}')
        e('s_cmp_ge_u32 s51, s37')
        e(f's_cbranch_scc1 K1_SKIP{rnd}')
        e('s_add_u32 s50, s36, s51')
        for ks in range(16):
            e(f'ds_read_b128 v[{32+4*ks}:{35+4*ks}], v{16+(ks&7)} offset:{(ks>>3)*256}')
        for ks in range(16):
            e(f's_waitcnt lgkmcnt({15-ks})')
            c0 = '0' if ks==0 else 'v[96:111]'
            c1 = '0' if ks==0 else 'v[112:127]'
            e(f'v_mfma_f32_32x32x16_bf16 v[96:111], v[{32+4*ks}:{35+4*ks}], v[{128+4*ks}:{131+4*ks}], {c0}')
            e(f'v_mfma_f32_32x32x16_bf16 v[112:127], v[{32+4*ks}:{35+4*ks}], v[{192+4*ks}:{195+4*ks}], {c1}')
        e('s_nop 7'); e('s_nop 7')
        e('s_lshl_b32 s59, s50, 13')
        for r in range(16):
            a0=96+r; a1=112+r
            t0=26+(r&1)*3; L=t0+1; m=t0+2
            if r%4==0 and r>0: e('s_add_u32 s59, s59, 2048')
            e(f'v_mul_f32 v{t0}, 0x{KAPPA:08x}, v{a0}')
            e(f'v_cvt_pk_bf16_f32 v{L}, v{t0}, 0')
            e(f'v_max_f32_e64 v{m}, |v{a1}|, s56')
            e(f'v_sub_u32 v{t0}, 0x8000, v{L}')
            e(f'v_add_u32 v{t0}, v{m}, v{t0}')
            e(f'v_bfi_b32 v{L}, s57, v{a1}, v{L}')
            e(f'v_bfi_b32 v{a0}, s58, v{t0}, v{L}')
            e(f'buffer_store_dword v{a0}, v24, s[20:23], s59 offen offset:{(r&3)*256}')
        if rnd<3:
            e('s_waitcnt vmcnt(16)')
            e(f's_branch K1_JOIN{rnd}')
        e.lab(f'K1_SKIP{rnd}')
        if rnd<3:
            e('s_waitcnt vmcnt(0)')
            e.lab(f'K1_JOIN{rnd}')
            for k in range(8):
                e(f'v_xor_b32 v{16+k}, 0x10000, v{16+k}')
            e('s_barrier')

def sort(e):
    e.c('================= SORT role =================')
    HIST=0; RECS=256; EAS=10496
    e('s_load_dwordx2 s[24:25], s[0:1], 8')
    e('s_load_dwordx4 s[28:31], s[0:1], 16')
    e('s_load_dwordx2 s[26:27], s[0:1], 88')
    e('v_and_b32 v1, 63, v0')
    e('v_lshlrev_b32 v2, 2, v0')
    e('v_lshlrev_b32 v3, 5, v0')
    e('v_mov_b32 v4, 0')
    e('v_cmp_gt_u32 vcc, 64, v0')
    e('s_and_saveexec_b64 s[40:41], vcc')
    e(f'ds_write_b32 v2, v4 offset:{HIST}')
    e('s_mov_b64 exec, s[40:41]')
    e('s_mul_i32 s3, s2, 10000')
    e('s_mul_i32 s4, s2, 80000')
    e('s_waitcnt lgkmcnt(0)')
    e('s_add_u32 s8, s24, s4'); e('s_addc_u32 s9, s25, 0'); e('s_and_b32 s9, s9, 0xffff'); e('s_mov_b32 s10, 80000'); e('s_mov_b32 s11, 0x20000')
    e('s_add_u32 s12, s28, s3'); e('s_addc_u32 s13, s29, 0'); e('s_and_b32 s13, s13, 0xffff'); e('s_mov_b32 s14, 10000'); e('s_mov_b32 s15, 0x20000')
    e('s_add_u32 s16, s30, s3'); e('s_addc_u32 s17, s31, 0'); e('s_and_b32 s17, s17, 0xffff'); e('s_mov_b32 s18, 10000'); e('s_mov_b32 s19, 0x20000')
    e(f's_add_u32 s5, s4, {WS_EAP}')
    e('s_add_u32 s20, s26, s5'); e('s_addc_u32 s21, s27, 0'); e('s_and_b32 s21, s21, 0xffff'); e('s_mov_b32 s22, 80000'); e('s_mov_b32 s23, 0x20000')
    e(f's_add_u32 s5, s3, {WS_REC}')
    e('s_add_u32 s32, s26, s5'); e('s_addc_u32 s33, s27, 0'); e('s_and_b32 s33, s33, 0xffff'); e('s_mov_b32 s34, 10000'); e('s_mov_b32 s35, 0x20000')
    e(f's_add_u32 s36, s26, {WS_OFF}'); e('s_addc_u32 s37, s27, 0'); e('s_and_b32 s37, s37, 0xffff'); e(f's_mov_b32 s38, {NB*C*4}'); e('s_mov_b32 s39, 0x20000')
    for r in range(5):
        e(f's_mov_b32 s6, {r*2048}')
        e(f'buffer_load_dword v{8+r}, v2, s[16:19], s6 offen')
    for r in range(5):
        e(f's_mov_b32 s6, {r*2048}')
        e(f'buffer_load_dword v{13+r}, v2, s[12:15], s6 offen')
    for r in range(5):
        e(f's_mov_b32 s6, {r*16384}')
        e(f'buffer_load_dwordx4 v[{32+8*r}:{35+8*r}], v3, s[8:11], s6 offen')
        e(f'buffer_load_dwordx4 v[{36+8*r}:{39+8*r}], v3, s[8:11], s6 offen offset:16')
    e('s_barrier')
    e('s_waitcnt vmcnt(10)')
    e('s_mov_b32 s6, 26716')
    e('v_mov_b32 v4, 1')
    e('s_movk_i32 s7, 452')
    e('v_cmp_gt_u32 s[42:43], s7, v0')
    for r in range(5):
        e(f'v_mul_u32_u24 v{18+r}, s6, v{8+r}')
        e(f'v_lshrrev_b32 v{18+r}, 22, v{18+r}')
        e(f'v_mul_u32_u24 v5, 157, v{18+r}')
        e(f'v_sub_u32 v5, v{8+r}, v5')
        e(f'v_lshl_or_b32 v{13+r}, v{13+r}, 8, v5')
        e(f'v_lshlrev_b32 v{18+r}, 2, v{18+r}')
        if r==4: e('s_mov_b64 exec, s[42:43]')
        e(f'ds_add_rtn_u32 v{23+r}, v{18+r}, v4 offset:{HIST}')
    e('s_mov_b64 exec, -1')
    e('s_waitcnt lgkmcnt(0)')
    e('s_barrier')
    e('v_lshlrev_b32 v5, 2, v1')
    e(f'ds_read_b32 v6, v5 offset:{HIST}')
    e('s_waitcnt lgkmcnt(0)')
    e('v_mov_b32 v7, v6')
    scan64(e, 7)
    e('v_sub_u32 v7, v7, v6')
    e('v_cmp_gt_u32 vcc, 64, v0')
    e('s_and_saveexec_b64 s[40:41], vcc')
    e('s_cbranch_execz K1_NOOFF')
    e('v_lshl_or_b32 v28, v6, 16, v7')
    e('v_lshlrev_b32 v29, 8, v1')
    e('s_lshl_b32 s6, s2, 2')
    e('buffer_store_dword v28, v29, s[36:39], s6 offen')
    e.lab('K1_NOOFF')
    e('s_mov_b64 exec, s[40:41]')
    for r in range(5):
        e(f'ds_bpermute_b32 v{8+r}, v{18+r}, v7')
    e('s_waitcnt lgkmcnt(0)')
    e('s_waitcnt vmcnt(0)')
    for r in range(5):
        e(f'v_add_u32 v{8+r}, v{8+r}, v{23+r}')
        e(f'v_lshlrev_b32 v{18+r}, 2, v{8+r}')
        e(f'v_lshlrev_b32 v{23+r}, 5, v{8+r}')
        if r==4: e('s_mov_b64 exec, s[42:43]')
        e(f'ds_write_b32 v{18+r}, v{13+r} offset:{RECS}')
        e(f'ds_write_b128 v{23+r}, v[{32+8*r}:{35+8*r}] offset:{EAS}')
        e(f'ds_write_b128 v{23+r}, v[{36+8*r}:{39+8*r}] offset:{EAS+16}')
    e('s_mov_b64 exec, -1')
    e('s_waitcnt lgkmcnt(0)')
    e('s_barrier')
    e('v_lshlrev_b32 v5, 4, v0')
    e(f'v_add_u32 v6, {7*8192}, v5')
    for a in range(10):
        if a<7: e(f'ds_read_b128 v[{32+4*a}:{35+4*a}], v5 offset:{EAS+a*8192}')
        else: e(f'ds_read_b128 v[{32+4*a}:{35+4*a}], v6 offset:{EAS+(a-7)*8192}')
    for a in range(2):
        e(f'ds_read_b128 v[{72+4*a}:{75+4*a}], v5 offset:{RECS+a*8192}')
    for a in range(10):
        e(f's_waitcnt lgkmcnt({11-a})')
        e(f's_mov_b32 s6, {a*8192}')
        e(f'buffer_store_dwordx4 v[{32+4*a}:{35+4*a}], v5, s[20:23], s6 offen')
    for a in range(2):
        e(f's_waitcnt lgkmcnt({1-a})')
        e(f's_mov_b32 s6, {a*8192}')
        e(f'buffer_store_dwordx4 v[{72+4*a}:{75+4*a}], v5, s[32:35], s6 offen')
```

```python
from common import *

L_CNT=0; L_CUR=768; L_HIST=1536; L_TMAX=1792; L_BASE=2048; L_SB=2816; L_NODE=3072; L_FLAG=3840
L_IDX=4096; L_EA=20480
STEP_MAX=240
K2_LDS=20480+131072
DUMMY_IDX=10000*256

V_LANE=1; V_J16=2; V_EA=3; V_IDX=4; V_XOFF=5; V_C=6
V_IX=8
V_AOP=12
V_B=16
RAW=(32,48)
V_G=64; V_T=80; V_NUM=96; V_DEN=100; V_AU=104; V_X=108; V_AUN=110; V_XN=114
V_N0=116; V_N1=117; V_XOFFN=119; V_TMP=120; V_N2=126; V_J8S=127
S_SL=3; S_BK=4; S_W=5
S_BV=8; S_AU=12; S_XS=16; S_OUT=20; S_REC=24; S_EAP=28; S_WC=32
S_OFF=36; S_EB4=40; S_EB32=44; S_CNT=48; S_MASK=52
S_REM=60; S_NP=61; S_LEFT=64; S_M16=65; S_T0=66; S_T1=67

def step(e, X, half, tag):
    raw=RAW[X]; oth=RAW[1-X]
    idx_off = L_IDX + (128 if X==0 else 192)
    ea_off = L_EA + (512 if X==0 else 1024)
    e('s_waitcnt lgkmcnt(0)')
    for r in range(4):
        e(f'v_add_u32 v{V_IX+r}, v{V_IX+r}, v{V_J16}')
    for r in range(4):
        e(f'buffer_load_dwordx4 v[{oth+4*r}:{oth+4*r+3}], v{V_IX+r}, s[{S_BV}:{S_BV+3}], 0 offen')
    e(f'ds_read_b128 v[{V_IX}:{V_IX+3}], v{V_IDX} offset:{idx_off}')
    e('s_waitcnt vmcnt(4)')
    rs = (0,1) if half else (0,1,2,3)
    def unp(i):
        for r in rs: e(f'v_lshlrev_b32 v{V_G+4*i+r}, 16, v{raw+4*r+i}')
    def mf(i):
        e(f'v_mfma_f32_16x16x32_bf16 v[{V_G+4*i}:{V_G+4*i+3}], v[{V_AOP}:{V_AOP+3}], v[{V_B+4*i}:{V_B+4*i+3}], v[{V_G+4*i}:{V_G+4*i+3}]')
    unp(0); unp(1); mf(0); unp(2); mf(1); unp(3); mf(2); e('s_nop 0'); mf(3)
    e(f'ds_read_b64 v[{V_AOP}:{V_AOP+1}], v{V_EA} offset:{ea_off}')
    if half: e('s_nop 1')
    for i in range(4):
        for r in rs:
            e(f'v_exp_f32_e64 v{V_T+4*r+i}, v{V_G+4*i+r} clamp')
    for r in rs:
        for ii in range(2):
            t=V_T+4*r+2*ii
            e(f'v_pk_add_f32 v[{t}:{t+1}], v[{t}:{t+1}], v[{V_C}:{V_C+1}]')
    for p in range(1 if half else 2):
        for ii in range(2):
            a=V_T+4*(2*p)+2*ii; b=V_T+4*(2*p+1)+2*ii
            va=raw+4*(2*p)+2*ii; vb=raw+4*(2*p+1)+2*ii
            P=V_G+6*ii; Nn=P+2; S=P+4
            e(f'v_pk_mul_f32 v[{P}:{P+1}], v[{a}:{a+1}], v[{b}:{b+1}]')
            e(f'v_pk_mul_f32 v[{Nn}:{Nn+1}], v[{va}:{va+1}], v[{b}:{b+1}]')
            e(f'v_rcp_f32 v{P}, v{P}')
            e(f'v_rcp_f32 v{P+1}, v{P+1}')
            e(f'v_pk_fma_f32 v[{Nn}:{Nn+1}], v[{vb}:{vb+1}], v[{a}:{a+1}], v[{Nn}:{Nn+1}]')
            e(f'v_pk_add_f32 v[{S}:{S+1}], v[{a}:{a+1}], v[{b}:{b+1}]')
            nu=V_NUM+2*ii; de=V_DEN+2*ii
            e(f'v_pk_fma_f32 v[{nu}:{nu+1}], v[{Nn}:{Nn+1}], v[{P}:{P+1}], v[{nu}:{nu+1}]')
            e(f'v_pk_fma_f32 v[{de}:{de+1}], v[{S}:{S+1}], v[{P}:{P+1}], v[{de}:{de+1}]')
    if X==1:
        e(f'v_add_u32 v{V_IDX}, 128, v{V_IDX}')
        e(f'v_add_u32 v{V_EA}, 0x400, v{V_EA}')

def finalize(e):
    T=V_TMP
    for i in range(4): e(f'v_rcp_f32 v{T+i}, v{V_DEN+i}')
    e('s_nop 0')
    for i in range(4): e(f'v_fma_f32 v{V_NUM+i}, v{V_NUM+i}, v{T+i}, v{V_AU+i}')
    for i in range(4): e(f'v_max_f32 v{V_NUM+i}, 0, v{V_NUM+i}')
    e(f'v_lshlrev_b32 v{T}, 16, v{V_X}')
    e(f'v_and_b32 v{T+1}, 0xffff0000, v{V_X}')
    e(f'v_lshlrev_b32 v{T+2}, 16, v{V_X+1}')
    e(f'v_and_b32 v{T+3}, 0xffff0000, v{V_X+1}')
    for i in range(4): e(f'v_add_f32 v{V_NUM+i}, v{V_NUM+i}, v{T+i}')
    e(f'v_cvt_pk_bf16_f32 v{T+4}, v{V_NUM}, v{V_NUM+1}')
    e(f'v_cvt_pk_bf16_f32 v{T+5}, v{V_NUM+2}, v{V_NUM+3}')
    e(f'buffer_store_dwordx2 v[{T+4}:{T+5}], v{V_XOFF}, s[{S_OUT}:{S_OUT+3}], 0 offen')

def prefetch_next(e):
    e(f'v_lshl_add_u32 v{V_TMP}, v{V_N0}, 8, v{V_J16}')
    e(f'v_lshl_add_u32 v{V_XOFFN}, v{V_N0}, 9, v{V_J8S}')
    e(f'buffer_load_dwordx4 v[{V_AUN}:{V_AUN+3}], v{V_TMP}, s[{S_AU}:{S_AU+3}], 0 offen')
    e(f'buffer_load_dwordx2 v[{V_XN}:{V_XN+1}], v{V_XOFFN}, s[{S_XS}:{S_XS+3}], 0 offen')
    e(f'v_mov_b32 v{V_N0}, v{V_N1}')
    e(f'v_mov_b32 v{V_N1}, v{V_N2}')
    e(f'v_mov_b32 v{V_N2}, 0x2710')

def setup(e):
    for i in range(4): e(f'v_mov_b32 v{V_AU+i}, v{V_AUN+i}')
    for i in range(2): e(f'v_mov_b32 v{V_X+i}, v{V_XN+i}')
    e(f'v_mov_b32 v{V_XOFF}, v{V_XOFFN}')
    for i in range(4):
        e(f'v_bfi_b32 v{V_B+4*i+2}, s{S_M16}, v{V_AU+i}, v{V_B+4*i+2}')
    for i in range(4): e(f'v_mov_b32 v{V_NUM+i}, 0')
    for i in range(4): e(f'v_mov_b32 v{V_DEN+i}, 0x{EPSS:08x}')
    prefetch_next(e)

def next_task(e, tag):
    e.lab(f'K2_NT{tag}')
    e('s_waitcnt vmcnt(0)')
    finalize(e)
    e.lab(f'K2_NTS{tag}')
    e(f's_cmp_eq_u32 s{S_LEFT}, 0')
    e('s_cbranch_scc1 K2_END')
    e(f's_sub_u32 s{S_LEFT}, s{S_LEFT}, 1')
    e('s_waitcnt vmcnt(0)')
    setup(e)
    e(f's_mov_b32 s{S_REM}, s{S_NP}')
    e(f's_mov_b32 s{S_NP}, s{S_NP+1}')
    e(f's_mov_b32 s{S_NP+1}, s{S_NP+2}')
    e(f's_cmp_le_i32 s{S_REM}, 0')
    e(f's_cbranch_scc1 K2_NT{tag}')

def phase2_round(e, recs, eas, tag):
    for i in range(4):
        e(f's_mov_b64 exec, s[{S_MASK+2*i}:{S_MASK+2*i+1}]')
        e(f'ds_add_rtn_u32 v{72+i}, v{68+i}, v{V_TMP} offset:{L_CUR}')
        e(f'ds_read_b32 v{76+i}, v{68+i} offset:{L_BASE}')
    e('s_mov_b64 exec, -1')
    e('s_waitcnt lgkmcnt(0)')
    for i in range(4):
        e(f'v_lshrrev_b32 v{V_TMP+1}, 2, v{72+i}')
        e(f'v_mad_u32_u24 v{V_TMP+1}, v{V_TMP+1}, 12, v{72+i}')
        e(f'v_add_u32 v{72+i}, v{V_TMP+1}, v{76+i}')
        e(f'v_lshlrev_b32 v{76+i}, 2, v{72+i}')
        e(f'v_lshlrev_b32 v{72+i}, 5, v{72+i}')
        e(f'v_and_b32 v{recs[i]}, 0xffffff00, v{recs[i]}')
    for i in range(4):
        e(f's_mov_b64 exec, s[{S_MASK+2*i}:{S_MASK+2*i+1}]')
        e(f'ds_write_b32 v{76+i}, v{recs[i]} offset:{L_IDX}')
        e(f'ds_write_b128 v{72+i}, v[{eas[i]}:{eas[i]+3}] offset:{L_EA}')
        e(f'ds_write_b128 v{72+i}, v[{eas[i]+4}:{eas[i]+7}] offset:{L_EA+16}')
    e('s_mov_b64 exec, -1')

def gen_k2(e, name):
    e.raw(f'.globl {name}')
    e.raw('.p2align 8')
    e.raw(f'.type {name},@function')
    e.lab(name)
    e('s_cmp_ge_u32 s2, 256')
    e('s_cbranch_scc1 K2_END')
    e('s_load_dwordx2 s[68:69], s[0:1], 0')
    e('s_load_dwordx2 s[70:71], s[0:1], 48')
    e('s_load_dwordx2 s[72:73], s[0:1], 72')
    e('s_load_dwordx2 s[74:75], s[0:1], 88')
    e('s_and_b32 s6, s2, 7')
    e(f's_lshr_b32 s{S_SL}, s6, 1')
    e('s_and_b32 s6, s6, 1')
    e('s_lshr_b32 s7, s2, 3')
    e('s_lshl_b32 s7, s7, 1')
    e(f's_or_b32 s{S_BK}, s7, s6')
    e(f'v_and_b32 v{V_LANE}, 63, v0')
    e('v_lshrrev_b32 v8, 6, v0')
    e('s_nop 0')
    e(f'v_readfirstlane_b32 s{S_W}, v8')
    e.c('---- LDS init')
    e('v_mov_b32 v8, 0'); e('v_mov_b32 v9, 0'); e('v_mov_b32 v10, 0'); e('v_mov_b32 v11, 0')
    e('v_lshlrev_b32 v12, 4, v0')
    e(f'v_add_u32 v13, {L_EA}, v12')
    e(f'v_add_u32 v14, {L_EA+65536}, v12')
    e('v_cmp_gt_u32 vcc, 0x80, v0')
    e('s_and_saveexec_b64 s[6:7], vcc')
    e('ds_write_b128 v12, v[8:11]')
    e('s_mov_b64 exec, s[6:7]')
    for a in range(4): e(f'ds_write_b128 v13, v[8:11] offset:{a*16384}')
    for a in range(4): e(f'ds_write_b128 v14, v[8:11] offset:{a*16384}')
    e(f'v_mov_b32 v16, 0x{DUMMY_IDX:x}'); e('v_mov_b32 v17, v16'); e('v_mov_b32 v18, v16'); e('v_mov_b32 v19, v16')
    e(f'ds_write_b128 v12, v[16:19] offset:{L_IDX}')
    e.c('---- SRDs')
    e('s_waitcnt lgkmcnt(0)')
    e(f's_lshl_b32 s6, s{S_BK}, 8')
    e(f's_lshl_b32 s7, s{S_W}, 4')
    e('s_add_u32 s6, s6, s7')
    e(f's_add_u32 s6, s6, {WS_OFF}')
    e('s_add_u32 s76, s74, s6')
    e('s_addc_u32 s77, s75, 0')
    e(f's_load_dwordx4 s[{S_OFF}:{S_OFF+3}], s[76:77], 0')
    e(f's_mul_i32 s6, s{S_SL}, {BV_SLICE}')
    e(f's_add_u32 s{S_BV}, s74, s6'); e(f's_addc_u32 s{S_BV+1}, s75, 0'); e(f's_and_b32 s{S_BV+1}, s{S_BV+1}, 0xffff')
    e(f's_mov_b32 s{S_BV+2}, {BV_SLICE}'); e(f's_mov_b32 s{S_BV+3}, 0x20000')
    e(f's_mul_i32 s6, s{S_SL}, {AU_SLICE}'); e(f's_add_u32 s6, s6, {WS_AU}')
    e(f's_add_u32 s{S_AU}, s74, s6'); e(f's_addc_u32 s{S_AU+1}, s75, 0'); e(f's_and_b32 s{S_AU+1}, s{S_AU+1}, 0xffff')
    e(f's_mov_b32 s{S_AU+2}, {AU_SLICE}'); e(f's_mov_b32 s{S_AU+3}, 0x20000')
    srd(e, S_XS, 's68', 's69', 5120000)
    srd(e, S_OUT, 's72', 's73', 5120000)
    e(f's_add_u32 s{S_REC}, s74, {WS_REC}'); e(f's_addc_u32 s{S_REC+1}, s75, 0'); e(f's_and_b32 s{S_REC+1}, s{S_REC+1}, 0xffff')
    e(f's_mov_b32 s{S_REC+2}, {E*4}'); e(f's_mov_b32 s{S_REC+3}, 0x20000')
    e(f's_add_u32 s{S_EAP}, s74, {WS_EAP}'); e(f's_addc_u32 s{S_EAP+1}, s75, 0'); e(f's_and_b32 s{S_EAP+1}, s{S_EAP+1}, 0xffff')
    e(f's_mov_b32 s{S_EAP+2}, {E*32}'); e(f's_mov_b32 s{S_EAP+3}, 0x20000')
    srd(e, S_WC, 's70', 's71', 8192)
    e.c('---- lane constants + Wc loads')
    e(f'v_and_b32 v8, 15, v{V_LANE}')
    e(f'v_lshrrev_b32 v9, 4, v{V_LANE}')
    e(f'v_lshlrev_b32 v{V_J16}, 4, v8')
    e(f's_lshl_b32 s6, s{S_SL}, 7')
    e(f'v_lshlrev_b32 v{V_J8S}, 3, v8')
    e(f'v_add_u32 v{V_J8S}, s6, v{V_J8S}')
    e(f'v_lshl_add_u32 v10, v9, 11, v{V_J8S}')
    for kk in range(4):
        e(f'buffer_load_dwordx2 v[{80+2*kk}:{81+2*kk}], v10, s[{S_WC}:{S_WC+3}], 0 offen offset:{kk*512}')
    e(f'v_lshlrev_b32 v124, 2, v{V_LANE}')
    e(f'v_lshlrev_b32 v125, 5, v{V_LANE}')
    e.c('---- segments')
    e('s_waitcnt lgkmcnt(0)')
    for i in range(4):
        e(f's_lshl_b32 s6, s{S_W}, 2')
        e(f's_add_u32 s6, s6, {i}')
        e(f's_mul_i32 s6, s6, {CE}')
        e(f's_and_b32 s7, s{S_OFF+i}, 0xffff')
        e('s_add_u32 s6, s6, s7')
        e(f's_lshl_b32 s{S_EB4+i}, s6, 2')
        e(f's_lshl_b32 s{S_EB32+i}, s6, 5')
        e(f's_lshr_b32 s{S_CNT+i}, s{S_OFF+i}, 16')
    for i in range(4):
        e(f'v_cmp_gt_i32 s[{S_MASK+2*i}:{S_MASK+2*i+1}], s{S_CNT+i}, v{V_LANE}')
    for i in range(4):
        e(f's_mov_b64 exec, s[{S_MASK+2*i}:{S_MASK+2*i+1}]')
        e(f'buffer_load_dword v{64+i}, v124, s[{S_REC}:{S_REC+3}], s{S_EB4+i} offen')
    for i in range(4):
        e(f's_mov_b64 exec, s[{S_MASK+2*i}:{S_MASK+2*i+1}]')
        e(f'buffer_load_dwordx4 v[{32+8*i}:{35+8*i}], v125, s[{S_EAP}:{S_EAP+3}], s{S_EB32+i} offen')
        e(f'buffer_load_dwordx4 v[{36+8*i}:{39+8*i}], v125, s[{S_EAP}:{S_EAP+3}], s{S_EB32+i} offen offset:16')
    e('s_mov_b64 exec, -1')
    e(f's_max_u32 s78, s{S_CNT}, s{S_CNT+1}')
    e(f's_max_u32 s79, s{S_CNT+2}, s{S_CNT+3}')
    e('s_max_u32 s78, s78, s79')
    e.c('---- Wc operand prep (wait only for Wc loads: 4 rec + 8 ea younger)')
    e('s_waitcnt vmcnt(12)')
    for i in range(4):
        for kk in range(4):
            srcr=80+2*kk+(i>>1)
            if i&1: e(f'v_and_b32 v{88+kk}, 0xffff0000, v{srcr}')
            else:   e(f'v_lshlrev_b32 v{88+kk}, 16, v{srcr}')
            e(f'v_mul_f32 v{88+kk}, 0x{KAPPA:08x}, v{88+kk}')
        e(f'v_cvt_pk_bf16_f32 v{V_B+4*i}, v88, v89')
        e(f'v_cvt_pk_bf16_f32 v{V_B+4*i+1}, v90, v91')
        e(f'v_mov_b32 v{V_B+4*i+2}, 0xc1400000')
        e(f'v_mov_b32 v{V_B+4*i+3}, 0')
    e(f'v_bfe_u32 v10, v{V_LANE}, 2, 2')
    e('v_cmp_eq_u32 vcc, v10, v9')
    e('v_mov_b32 v10, 0x3f800000')
    e('v_mov_b32 v11, 0x3f803f80')
    e(f'v_cndmask_b32 v{V_AOP+2}, v10, v11, vcc')
    e(f'v_mov_b32 v{V_AOP+3}, 0')
    e(f'v_mov_b32 v{V_C}, 0x{CSMALL:08x}')
    e(f'v_mov_b32 v{V_C+1}, 0x{CSMALL:08x}')
    e(f's_mov_b32 s{S_M16}, 0xffff')
    e(f'v_mov_b32 v{V_TMP}, 1')
    e('s_waitcnt lgkmcnt(0)')
    e('s_barrier')
    e.c('---- phase 1: count')
    e('s_waitcnt vmcnt(8)')
    for i in range(4):
        e(f'v_and_b32 v{68+i}, 0xff, v{64+i}')
        e(f'v_lshlrev_b32 v{68+i}, 2, v{68+i}')
    for i in range(4):
        e(f's_mov_b64 exec, s[{S_MASK+2*i}:{S_MASK+2*i+1}]')
        e(f'ds_add_u32 v{68+i}, v{V_TMP} offset:{L_CNT}')
    e('s_mov_b64 exec, -1')
    e('s_mov_b32 s79, 64')
    e.lab('K2_P1X')
    e('s_cmp_ge_u32 s79, s78')
    e('s_cbranch_scc1 K2_P1XD')
    for i in range(4):
        e(f's_sub_i32 s6, s{S_CNT+i}, s79')
        e(f'v_cmp_gt_i32 s[80:81], s6, v{V_LANE}')
        e('s_lshl_b32 s7, s79, 2')
        e(f's_add_u32 s7, s7, s{S_EB4+i}')
        e('s_mov_b64 exec, s[80:81]')
        e(f'buffer_load_dword v{V_TMP+1}, v124, s[{S_REC}:{S_REC+3}], s7 offen')
        e('s_waitcnt vmcnt(0)')
        e(f'v_and_b32 v{V_TMP+1}, 0xff, v{V_TMP+1}')
        e(f'v_lshlrev_b32 v{V_TMP+1}, 2, v{V_TMP+1}')
        e(f'ds_add_u32 v{V_TMP+1}, v{V_TMP} offset:{L_CNT}')
        e('s_mov_b64 exec, -1')
    e('s_add_u32 s79, s79, 64')
    e('s_branch K2_P1X')
    e.lab('K2_P1XD')
    e('s_waitcnt lgkmcnt(0)')
    e('s_barrier')
    e.c('---- node phase (wave 0)')
    e(f's_cmp_lg_u32 s{S_W}, 0')
    e('s_cbranch_scc1 K2_NODE_DONE')
    for k in range(3): e(f'ds_read_b32 v{96+k}, v124 offset:{L_CNT+256*k}')
    e('s_waitcnt lgkmcnt(0)')
    for k in range(3):
        e(f'v_add_u32 v{99+k}, 1, v{96+k}')
        e(f'v_lshrrev_b32 v{99+k}, 1, v{99+k}')
        e(f'v_min_u32 v{102+k}, 63, v{99+k}')
        e(f'v_lshlrev_b32 v{102+k}, 2, v{102+k}')
        e(f'ds_add_rtn_u32 v{105+k}, v{102+k}, v{V_TMP} offset:{L_HIST}')
    e('s_waitcnt lgkmcnt(0)')
    e('v_sub_u32 v108, 252, v124')
    e(f'ds_read_b32 v109, v108 offset:{L_HIST}')
    e('s_waitcnt lgkmcnt(0)')
    e('v_mov_b32 v110, v109')
    scan64(e,110)
    e('v_sub_u32 v110, v110, v109')
    for k in range(3):
        e(f'v_sub_u32 v{102+k}, 252, v{102+k}')
        e(f'ds_bpermute_b32 v{111+k}, v{102+k}, v110')
    e('s_waitcnt lgkmcnt(0)')
    e(f's_mul_i32 s6, s{S_BK}, {BN}')
    e(f's_sub_u32 s7, {N}, s6')
    e(f's_min_u32 s7, s7, {BN}')
    for k in range(3):
        e(f'v_add_u32 v{111+k}, v{111+k}, v{105+k}')
        e(f'v_lshrrev_b32 v114, 2, v{111+k}')
        e(f'v_and_b32 v{105+k}, 3, v{111+k}')
        e(f'v_lshrrev_b32 v115, 4, v114')
        e(f'v_and_b32 v114, 15, v114')
        e(f'v_bfe_i32 v116, v115, 0, 1')
        e(f'v_and_b32 v116, 15, v116')
        e(f'v_xor_b32 v114, v114, v116')
        e(f'v_mad_u32_u24 v114, v114, 3, v115')
        e(f'v_lshlrev_b32 v{102+k}, 2, v114')
        e(f'ds_max_u32 v{102+k}, v{99+k} offset:{L_TMAX}')
        e(f'v_add_u32 v115, {64*k}, v{V_LANE}')
        e(f'v_cmp_gt_u32 vcc, s7, v115')
        e(f'v_add_u32 v115, s6, v115')
        e(f'v_mov_b32 v116, 0x2710')
        e(f'v_cndmask_b32 v115, v116, v115, vcc')
        e(f'v_lshlrev_b32 v116, 2, v{102+k}')
        e(f'v_lshl_add_u32 v116, v{105+k}, 2, v116')
        e(f'ds_write_b32 v116, v115 offset:{L_NODE}')
    e('s_waitcnt lgkmcnt(0)')
    e(f'ds_read_b32 v108, v124 offset:{L_TMAX}')
    e('s_waitcnt lgkmcnt(0)')
    e('v_add_u32 v108, 1, v108')
    e('v_lshrrev_b32 v108, 1, v108')
    e('v_mov_b32 v109, v108')
    scan64(e,109)
    e('v_readlane_b32 s6, v109, 63')
    e('v_sub_u32 v109, v109, v108')
    e(f'ds_write_b32 v124, v109 offset:{L_SB}')
    for k in range(3):
        e(f'ds_bpermute_b32 v{111+k}, v{102+k}, v109')
    e(f's_cmp_gt_u32 s6, {STEP_MAX}')
    e('s_cselect_b32 s6, 1, 0')
    e('v_mov_b32 v108, s6')
    e(f'v_mov_b32 v110, {L_FLAG}')
    e('ds_write_b32 v110, v108')
    e('s_waitcnt lgkmcnt(0)')
    for k in range(3):
        e(f'v_lshlrev_b32 v{111+k}, 4, v{111+k}')
        e(f'v_lshl_add_u32 v{111+k}, v{105+k}, 2, v{111+k}')
        e(f'ds_write_b32 v124, v{111+k} offset:{L_BASE+256*k}')
    e('s_waitcnt lgkmcnt(0)')
    e.lab('K2_NODE_DONE')
    e('s_barrier')
    e(f'v_mov_b32 v110, {L_FLAG}')
    e('ds_read_b32 v108, v110')
    e('s_waitcnt lgkmcnt(0)')
    e('v_readfirstlane_b32 s6, v108')
    e('s_nop 3')
    e('s_cmp_lg_u32 s6, 0')
    e('s_cbranch_scc1 K2_SLOW')
    e.c('---- phase 2')
    e('s_waitcnt vmcnt(0)')
    phase2_round(e, [64,65,66,67], [32,40,48,56], 'a')
    e('s_mov_b32 s79, 64')
    e.lab('K2_P2X')
    e('s_cmp_ge_u32 s79, s78')
    e('s_cbranch_scc1 K2_P2XD')
    e('s_waitcnt lgkmcnt(0)')
    for i in range(4):
        e(f's_sub_i32 s6, s{S_CNT+i}, s79')
        e(f'v_cmp_gt_i32 s[{S_MASK+2*i}:{S_MASK+2*i+1}], s6, v{V_LANE}')
    for i in range(4):
        e('s_lshl_b32 s7, s79, 2')
        e(f's_add_u32 s7, s7, s{S_EB4+i}')
        e('s_lshl_b32 s6, s79, 5')
        e(f's_add_u32 s6, s6, s{S_EB32+i}')
        e(f's_mov_b64 exec, s[{S_MASK+2*i}:{S_MASK+2*i+1}]')
        e(f'buffer_load_dword v{64+i}, v124, s[{S_REC}:{S_REC+3}], s7 offen')
        e(f'buffer_load_dwordx4 v[{32+8*i}:{35+8*i}], v125, s[{S_EAP}:{S_EAP+3}], s6 offen')
        e(f'buffer_load_dwordx4 v[{36+8*i}:{39+8*i}], v125, s[{S_EAP}:{S_EAP+3}], s6 offen offset:16')
    e('s_mov_b64 exec, -1')
    e('s_waitcnt vmcnt(0)')
    for i in range(4):
        e(f'v_and_b32 v{68+i}, 0xff, v{64+i}')
        e(f'v_lshlrev_b32 v{68+i}, 2, v{68+i}')
    phase2_round(e, [64,65,66,67], [32,40,48,56], 'b')
    e('s_add_u32 s79, s79, 64')
    e('s_branch K2_P2X')
    e.lab('K2_P2XD')
    e('s_waitcnt lgkmcnt(0)')
    e('s_barrier')
    e.c('---- main init')
    e(f'v_lshrrev_b32 v9, 4, v{V_LANE}')
    e(f's_mul_i32 s6, s{S_W}, 12')
    e('v_mov_b32 v10, s6')
    e(f'ds_read_b32 v96, v10 offset:{L_SB}')
    e(f'ds_read_b32 v97, v10 offset:{L_TMAX}')
    e(f'ds_read_b32 v98, v10 offset:{L_TMAX+4}')
    e(f'ds_read_b32 v99, v10 offset:{L_TMAX+8}')
    e(f's_mul_i32 s6, s{S_W}, 48')
    e('v_lshlrev_b32 v11, 2, v9')
    e('v_add_u32 v11, s6, v11')
    e(f'ds_read_b32 v{V_N0}, v11 offset:{L_NODE}')
    e(f'ds_read_b32 v{V_N1}, v11 offset:{L_NODE+16}')
    e(f'ds_read_b32 v{V_N2}, v11 offset:{L_NODE+32}')
    e('s_waitcnt lgkmcnt(0)')
    e('v_readfirstlane_b32 s6, v96')
    e(f'v_readfirstlane_b32 s{S_NP}, v97')
    e(f'v_readfirstlane_b32 s{S_NP+1}, v98')
    e(f'v_readfirstlane_b32 s{S_NP+2}, v99')
    e('s_nop 3')
    e('s_lshl_b32 s7, s6, 6')
    e(f'v_lshlrev_b32 v{V_IDX}, 4, v9')
    e(f'v_add_u32 v{V_IDX}, s7, v{V_IDX}')
    e('s_lshl_b32 s7, s6, 9')
    e(f'v_and_b32 v10, 15, v{V_LANE}')
    e(f'v_lshlrev_b32 v{V_EA}, 5, v10')
    e(f'v_lshl_add_u32 v{V_EA}, v9, 3, v{V_EA}')
    e(f'v_add_u32 v{V_EA}, s7, v{V_EA}')
    e(f'ds_read_b128 v[{V_IX}:{V_IX+3}], v{V_IDX} offset:{L_IDX}')
    prefetch_next(e)
    e('s_waitcnt lgkmcnt(0)')
    for r in range(4):
        e(f'v_add_u32 v{V_IX+r}, v{V_IX+r}, v{V_J16}')
    for r in range(4):
        e(f'buffer_load_dwordx4 v[{RAW[0]+4*r}:{RAW[0]+4*r+3}], v{V_IX+r}, s[{S_BV}:{S_BV+3}], 0 offen')
    e(f'ds_read_b128 v[{V_IX}:{V_IX+3}], v{V_IDX} offset:{L_IDX+64}')
    e(f'ds_read_b64 v[{V_AOP}:{V_AOP+1}], v{V_EA} offset:{L_EA}')
    e(f's_mov_b32 s{S_LEFT}, 3')
    e('s_branch K2_NTSA')
    e.c('---- main loop')
    for X,tag in ((0,'A'),(1,'B')):
        e.lab(f'K2_LOOP{tag}')
        e(f's_cmp_gt_i32 s{S_REM}, 0')
        e(f's_cbranch_scc1 K2_GO{tag}')
        next_task(e, tag)
        e.lab(f'K2_GO{tag}')
        e(f's_cmp_eq_u32 s{S_REM}, 1')
        e(f's_cbranch_scc1 K2_HALF{tag}')
        step(e, X, False, tag)
        e(f's_branch K2_AFT{tag}')
        e.lab(f'K2_HALF{tag}')
        step(e, X, True, tag)
        e.lab(f'K2_AFT{tag}')
        e(f's_sub_i32 s{S_REM}, s{S_REM}, 2')
    e('s_branch K2_LOOPA')
    e.lab('K2_SLOW')
    e.c('TODO slow path')
    e.lab('K2_END')
    e('s_endpgm')
```

```python
import sys
from common import *
import k1, k2
NAME='standalone__edge_featured_mpnn_gatedgcn__graph'
def build(only=None):
    hdr=open('cdna_kernels/'+NAME+'.s.ref').read().split('\n')
    head=[l for l in hdr if l.startswith(';') and '@launch' not in l and 'Override launch' not in l and 'grid=ceil' not in l]
    e=Em()
    for l in head: e.raw(l)
    e.raw(f'; @launch kernel=k1_kernel grid=(256,1,1) block=(512,1,1) lds={k1.K1_LDS}')
    if only!='k1':
        e.raw(f'; @launch kernel={NAME}_kernel grid=(256,1,1) block=(1024,1,1) lds={k2.K2_LDS}')
    e.raw('.amdgcn_target "amdgcn-amd-amdhsa--gfx950"')
    e.raw('.text')
    k1.gen_k1(e,'k1_kernel')
    k2.gen_k2(e,NAME+'_kernel')
    e.raw('.section .rodata,"a"')
    e.raw(kdesc('k1_kernel',256,64))
    e.raw(kdesc(NAME+'_kernel',128,96))
    return e.text()
if __name__=='__main__':
    out=sys.argv[1] if len(sys.argv)>1 else 'cdna_kernels/'+NAME+'.s'
    only=sys.argv[2] if len(sys.argv)>2 else None
    open(out,'w').write(build(only))
    print('wrote',out)
```

```python
import struct, math
def f2u(f): return struct.unpack('<I',struct.pack('<f',f))[0]

N=10000; E=160000; D=256
NB=64; BN=157; C=64; CE=2500
BV_SLICE=10001*256; AU_SLICE=10000*256
WS_BV=0
WS_AU=WS_BV+4*BV_SLICE
WS_REC=WS_AU+4*AU_SLICE
WS_EAP=WS_REC+E*4
WS_OFF=WS_EAP+E*32
WS_END=WS_OFF+NB*C*4
KAPPA=f2u(-math.log2(math.e))
OFFLOG=48
CSMALL=f2u(2.0**-OFFLOG)
EPSS=f2u(1e-6*2.0**OFFLOG)

class Em:
    def __init__(self): self.l=[]
    def __call__(self,s): self.l.append('    '+s)
    def lab(self,s): self.l.append(s+':')
    def c(self,s): self.l.append('    ; '+s)
    def raw(self,s): self.l.append(s)
    def text(self): return '\n'.join(self.l)+'\n'

def vr(a,n=1): return f'v{a}' if n==1 else f'v[{a}:{a+n-1}]'
def sr(a,n=1): return f's{a}' if n==1 else f's[{a}:{a+n-1}]'

def srd(e, s, lo, hi, num):
    if lo!=f's{s}': e(f's_mov_b32 s{s}, {lo}')
    e(f's_and_b32 s{s+1}, {hi}, 0xffff')
    e(f's_mov_b32 s{s+2}, {num}')
    e(f's_mov_b32 s{s+3}, 0x20000')

def scan64(e, v):
    for sh in (1,2,4,8):
        e('s_nop 1')
        e(f'v_add_u32_dpp v{v}, v{v}, v{v} row_shr:{sh} row_mask:0xf bank_mask:0xf bound_ctrl:0')
    e('s_nop 1')
    e(f'v_add_u32_dpp v{v}, v{v}, v{v} row_bcast:15 row_mask:0xa bank_mask:0xf')
    e('s_nop 1')
    e(f'v_add_u32_dpp v{v}, v{v}, v{v} row_bcast:31 row_mask:0xc bank_mask:0xf')
    e('s_nop 1')

def kdesc(name, vgpr, sgpr):
    acc=((vgpr+3)//4)*4
    return f'''.p2align 6
.amdhsa_kernel {name}
  .amdhsa_next_free_vgpr {vgpr}
  .amdhsa_next_free_sgpr {sgpr}
  .amdhsa_accum_offset {acc}
  .amdhsa_group_segment_fixed_size 0
  .amdhsa_kernarg_size 96
  .amdhsa_user_sgpr_count 2
  .amdhsa_user_sgpr_kernarg_segment_ptr 1
  .amdhsa_system_sgpr_workgroup_id_x 1
.end_amdhsa_kernel
'''

WS_DBG=32*1024*1024
class Stamps:
    def __init__(self, on, vreg, kern=0):
        self.on=on; self.v=vreg; self.n=0; self.names=[]; self.kern=kern; self.flushed=0
    def stamp(self, e, name, real=False, vreg=None):
        if not self.on: return
        if name in self.names: i=self.names.index(name)
        else:
            i=self.n; self.n+=1; self.names.append(name)
        e('s_memrealtime s[100:101]' if real else 's_memtime s[100:101]')
        e('s_waitcnt lgkmcnt(0)')
        e(f'v_writelane_b32 v{vreg if vreg is not None else self.v}, s100, {i}')
    def flush(self, e, ws_lo, ws_hi, wave_sgpr, vtmp, srd, lanes, vreg=None):
        if not self.on: return
        lo,hi=lanes
        mask=((1<<hi)-1)&~((1<<lo)-1)
        e(f's_add_u32 s{srd}, {ws_lo}, {WS_DBG+self.kern*(1<<21)}')
        e(f's_addc_u32 s{srd+1}, {ws_hi}, 0')
        e(f's_and_b32 s{srd+1}, s{srd+1}, 0xffff')
        e(f's_mov_b32 s{srd+2}, {1<<21}')
        e(f's_mov_b32 s{srd+3}, 0x20000')
        e('s_lshl_b32 s100, s2, 4')
        e(f's_add_u32 s100, s100, {wave_sgpr}')
        e('s_lshl_b32 s100, s100, 7')
        e(f'v_mbcnt_lo_u32_b32 v{vtmp}, -1, 0')
        e(f'v_mbcnt_hi_u32_b32 v{vtmp}, -1, v{vtmp}')
        e(f'v_lshlrev_b32 v{vtmp}, 2, v{vtmp}')
        e(f's_mov_b32 exec_lo, 0x{mask&0xffffffff:x}')
        e(f's_mov_b32 exec_hi, 0')
        e(f'buffer_store_dword v{vreg if vreg is not None else self.v}, v{vtmp}, s[{srd}:{srd+3}], s100 offen')
        e('s_waitcnt vmcnt(0)')
        e('s_mov_b64 exec, -1')
```

```python
from common import *

K1_LDS = 131072
NSORT = 64

DIAG=False
STG=None
STS=None
def gen_k1(e, name):
    global STG,STS
    STG=Stamps(DIAG,31,kern=0); STS=Stamps(DIAG,31,kern=0)
    e.raw(f'.globl {name}')
    e.raw('.p2align 8')
    e.raw(f'.type {name},@function')
    e.lab(name)
    e('s_cmp_ge_u32 s2, 256')
    e('s_cbranch_scc1 K1_END')
    e('s_cmp_lt_u32 s2, 64')
    e('s_cbranch_scc1 K1_SORT')
    gemm(e)
    e('s_branch K1_END')
    e.lab('K1_SORT')
    sort(e)
    e.lab('K1_END')
    e('s_endpgm')

import os
ST_FLAGS=os.environ.get('STF',' sc1')
def gemm(e):
    e.c('================= GEMM role =================')
    STG.stamp(e,'real0',real=True); STG.stamp(e,'start')
    e('s_load_dwordx2 s[24:25], s[0:1], 0')
    e('s_load_dwordx4 s[28:31], s[0:1], 32')
    e('s_load_dwordx4 s[32:35], s[0:1], 56')
    e('s_load_dwordx2 s[26:27], s[0:1], 88')
    e('s_sub_u32 s3, s2, 64')
    e('s_and_b32 s4, s3, 7')
    e('s_lshr_b32 s5, s3, 3')
    e('s_mul_i32 s6, s5, 43')
    e('s_lshr_b32 s6, s6, 7')
    e('s_mul_i32 s7, s6, 3')
    e('s_sub_u32 s7, s5, s7')
    e('s_mul_i32 s4, s4, 3')
    e('s_add_u32 s4, s4, s7')
    e('s_mul_i32 s36, s4, 13')
    e('s_cmp_eq_u32 s4, 23')
    e('s_cselect_b32 s37, 14, 13')
    e('s_lshr_b32 s38, s6, 2')
    e('s_and_b32 s39, s6, 3')
    e('v_and_b32 v1, 63, v0')
    e('v_lshrrev_b32 v2, 6, v0')
    e('s_nop 0')
    e('v_readfirstlane_b32 s40, v2')
    e('s_nop 3')
    e('s_and_b32 s41, s40, 1')
    e('s_lshr_b32 s42, s40, 1')
    e('v_lshrrev_b32 v2, 2, v1')
    e('v_and_b32 v3, 3, v1')
    e('v_lshlrev_b32 v4, 9, v2')
    e('v_lshl_add_u32 v4, v3, 4, v4')
    e('v_lshrrev_b32 v2, 5, v1')
    e('v_lshlrev_b32 v6, 9, v2')
    e('v_bfe_u32 v3, v1, 2, 2')
    e('v_lshl_add_u32 v6, v3, 6, v6')
    e('v_bfe_u32 v3, v1, 4, 1')
    e('v_lshl_add_u32 v6, v3, 5, v6')
    e('v_and_b32 v3, 3, v1')
    e('v_lshl_add_u32 v6, v3, 3, v6')
    e('s_lshl_b32 s43, s41, 14')
    e('s_add_u32 s43, s43, 0x10000')
    e('v_add_u32 v6, s43, v6')
    e('v_lshrrev_b32 v2, 5, v1')
    e('v_and_b32 v3, 31, v1')
    for a in range(8):
        e(f'v_add_u32 v7, {2*a}, v2')
        e(f'v_xor_b32 v7, v7, v3')
        e(f'v_lshlrev_b32 v7, 4, v7')
        e(f'v_lshl_add_u32 v{8+a}, v2, 9, v7')
    e('v_and_b32 v7, 15, v1')
    e('v_lshlrev_b32 v25, 9, v3')
    e('s_lshl_b32 s43, s42, 14')
    e('v_add_u32 v25, s43, v25')
    for k in range(8):
        e(f'v_add_u32 v26, {2*k}, v2')
        e(f'v_xor_b32 v26, v26, v7')
        e(f'v_lshl_add_u32 v{16+k}, v26, 4, v25')
    e('v_lshrrev_b32 v24, 3, v1')
    e('v_lshlrev_b32 v24, 8, v24')
    e('v_and_b32 v26, 7, v1')
    e('v_lshl_add_u32 v24, v26, 4, v24')
    e('s_lshl_b32 s43, s41, 7')
    e('v_add_u32 v24, s43, v24')
    e('s_lshl_b32 s43, s42, 14')
    e('s_lshl_b32 s44, s41, 13')
    e('s_add_u32 s43, s43, s44')
    e('v_lshlrev_b32 v5, 9, v2')
    e('v_lshl_add_u32 v5, v3, 2, v5')
    e('v_add_u32 v5, s43, v5')
    e('v_lshlrev_b32 v7, 4, v1')
    e('v_add_u32 v7, s43, v7')
    e('s_waitcnt lgkmcnt(0)')
    srd(e, 8, 's24', 's25', 5120000)
    e('s_cmp_eq_u32 s38, 0')
    e('s_cselect_b32 s12, s30, s28')
    e('s_cselect_b32 s13, s31, s29')
    e('s_cselect_b32 s16, s34, s32')
    e('s_cselect_b32 s17, s35, s33')
    e('s_cmp_lt_u32 s40, 4')
    e('s_cselect_b32 s12, s12, s16')
    e('s_cselect_b32 s13, s13, s17')
    e('s_and_b32 s13, s13, 0xffff')
    e('s_mov_b32 s14, 131072')
    e('s_mov_b32 s15, 0x20000')
    e(f's_mul_i32 s43, s39, {BV_SLICE}')
    e(f's_mul_i32 s44, s39, {AU_SLICE}')
    e(f's_add_u32 s44, s44, {WS_AU}')
    e('s_cmp_eq_u32 s38, 0')
    e('s_cselect_b32 s43, s43, s44')
    e('s_add_u32 s20, s26, s43')
    e('s_addc_u32 s21, s27, 0')
    e('s_and_b32 s21, s21, 0xffff')
    e(f's_mov_b32 s22, {AU_SLICE}')
    e('s_mov_b32 s23, 0x20000')
    STG.stamp(e,'kernarg')
    e('s_lshl_b32 s45, s39, 7')
    e('s_bfe_u32 s46, s40, 0x10001')
    e('s_lshl_b32 s46, s46, 6')
    e('s_add_u32 s45, s45, s46')
    e('s_lshl_b32 s46, s41, 16')
    e('s_add_u32 s45, s45, s46')
    e('s_lshl_b32 s46, s42, 14')
    e('s_lshl_b32 s47, s41, 13')
    e('s_add_u32 s46, s46, s47')
    e('s_add_u32 s46, s46, 0x10000')
    for a in range(8):
        e('s_mov_b32 m0, s46')
        e('s_add_u32 s46, s46, 1024')
        e('buffer_load_dwordx4 v4, s[12:15], s45 offen lds')
        e('s_add_u32 s45, s45, 8192')
    e('s_lshl_b32 s47, s42, 14')
    e('s_lshl_b32 s43, s41, 13')
    e('s_add_u32 s47, s47, s43')
    def dma(tile_sgpr, setidx_sgpr_or_int):
        e(f's_lshl_b32 s48, {tile_sgpr}, 14')
        e('s_lshl_b32 s43, s41, 13')
        e('s_add_u32 s48, s48, s43')
        e(f's_add_u32 s49, s47, {setidx_sgpr_or_int}')
        e('s_mov_b32 m0, s49')
        e('s_nop 0')
        for a in range(4):
            e(f'buffer_load_dwordx4 v{8+a}, s[8:11], s48 offen offset:{a*1024} lds')
        e('s_add_u32 s49, s49, 4096')
        e('s_add_u32 s48, s48, 4096')
        e('s_mov_b32 m0, s49')
        e('s_nop 0')
        for a in range(4):
            e(f'buffer_load_dwordx4 v{12+a}, s[8:11], s48 offen offset:{a*1024} lds')
    e('s_add_u32 s50, s36, s42')
    dma('s50', 0)
    e('s_or_b32 s43, s38, s4')
    e('s_or_b32 s43, s43, s40')
    e('s_cmp_lg_u32 s43, 0')
    e('s_cbranch_scc1 K1_NODUMMY')
    e('s_mov_b32 s52, s20')
    e('s_mov_b32 s53, s21')
    e(f's_mov_b32 s54, {BV_SLICE}')
    e('s_mov_b32 s55, 0x20000')
    e('v_lshlrev_b32 v26, 2, v1')
    e('v_mov_b32 v27, 0x7180')
    e(f's_mov_b32 s43, {10000*256}')
    e('buffer_store_dword v27, v26, s[52:55], s43 offen sc1')
    e('s_waitcnt vmcnt(0)')
    e.lab('K1_NODUMMY')
    e('s_mov_b32 s56, 0x00800000')
    e('s_mov_b32 s57, 0x80000000')
    e('s_mov_b32 s58, 0x7fff0000')
    e('s_mov_b32 s60, 0')
    e('s_mov_b32 s61, 0')
    e('s_cmp_lt_u32 s40, 4')
    e('s_cbranch_scc1 K1_W0')
    e('s_waitcnt vmcnt(8)')
    e('s_branch K1_W1')
    e.lab('K1_W0')
    e('s_waitcnt vmcnt(0)')
    e.lab('K1_W1')
    STG.stamp(e,'Wloaded')
    e('s_barrier')
    STG.stamp(e,'B1')
    e('s_add_u32 s43, s36, 4')
    e('s_lshl_b32 s43, s43, 14')
    e('s_mul_i32 s44, s6, 20480')
    e('s_add_u32 s43, s43, s44')
    e('v_lshlrev_b32 v26, 7, v0')
    e('s_movk_i32 s44, 160')
    e('v_cmp_gt_u32 vcc, s44, v0')
    e('s_and_saveexec_b64 s[52:53], vcc')
    e('s_cbranch_execz K1_NOPF')
    e('buffer_load_dword v30, v26, s[8:11], s43 offen')
    e.lab('K1_NOPF')
    e('s_mov_b64 exec, s[52:53]')
    def trreads(kss):
        for ks in kss:
            for mu in range(2):
                base=128+mu*64+ks*4
                for u in range(2):
                    e(f'ds_read_b64_tr_b16 v[{base+2*u}:{base+2*u+1}], v6 offset:{mu*32768+ks*1024+u*256}')
    def mfmas(first_wait):
        for ks in range(16):
            w=first_wait(ks)
            if w is not None: e(f's_waitcnt lgkmcnt({w})')
            c0 = '0' if ks==0 else 'v[96:111]'
            c1 = '0' if ks==0 else 'v[112:127]'
            e(f'v_mfma_f32_32x32x16_bf16 v[96:111], v[{48+4*ks}:{51+4*ks}], v[{128+4*ks}:{131+4*ks}], {c0}')
            e(f'v_mfma_f32_32x32x16_bf16 v[112:127], v[{48+4*ks}:{51+4*ks}], v[{192+4*ks}:{195+4*ks}], {c1}')
            yield ks
    e('s_cmp_lt_u32 s40, 4')
    e('s_cbranch_scc1 K1_G0FIRST')
    trreads(range(16))
    e('s_waitcnt lgkmcnt(0) vmcnt(0)')
    e('s_barrier')
    e('s_add_u32 s62, s42, 4')
    e('s_add_u32 s50, s36, s62')
    dma('s50', 0x10000)
    e('s_branch K1_LOOP')
    e.lab('K1_G0FIRST')
    e('s_setprio 3')
    for ks in range(16):
        e(f'ds_read_b128 v[{32+4*ks}:{35+4*ks}], v{16+(ks&7)} offset:{(ks>>3)*256}')
        trreads([ks])
        if ks>=2:
            k2=ks-2
            e(f's_waitcnt lgkmcnt(10)')
            c0 = '0' if k2==0 else 'v[96:111]'; c1 = '0' if k2==0 else 'v[112:127]'
            e(f'v_mfma_f32_32x32x16_bf16 v[96:111], v[{32+4*k2}:{35+4*k2}], v[{128+4*k2}:{131+4*k2}], {c0}')
            e(f'v_mfma_f32_32x32x16_bf16 v[112:127], v[{32+4*k2}:{35+4*k2}], v[{192+4*k2}:{195+4*k2}], {c1}')
    for k2 in (14,15):
        e(f's_waitcnt lgkmcnt({5 if k2==14 else 0})')
        e(f'v_mfma_f32_32x32x16_bf16 v[96:111], v[{32+4*k2}:{35+4*k2}], v[{128+4*k2}:{131+4*k2}], v[96:111]')
        e(f'v_mfma_f32_32x32x16_bf16 v[112:127], v[{32+4*k2}:{35+4*k2}], v[{192+4*k2}:{195+4*k2}], v[112:127]')
    e('s_mov_b32 s51, s42')
    e('s_setprio 0')
    e('s_barrier')
    e('s_add_u32 s62, s51, 4')
    e('s_add_u32 s50, s36, s62')
    dma('s50', 0x10000)
    e('s_branch K1_EPI')
    e.lab('K1_LOOP')
    e('s_lshl_b32 s51, s60, 2')
    e('s_add_u32 s51, s51, s42')
    e('s_cmp_ge_u32 s51, s37')
    e('s_cbranch_scc1 K1_NOMFMA')
    e('s_setprio 3')
    for ks in range(16):
        e(f'ds_read_b128 v[{32+4*ks}:{35+4*ks}], v{16+(ks&7)} offset:{(ks>>3)*256}')
    for ks in range(16):
        e(f's_waitcnt lgkmcnt({15-ks})')
        c0 = '0' if ks==0 else 'v[96:111]'
        c1 = '0' if ks==0 else 'v[112:127]'
        e(f'v_mfma_f32_32x32x16_bf16 v[96:111], v[{32+4*ks}:{35+4*ks}], v[{128+4*ks}:{131+4*ks}], {c0}')
        e(f'v_mfma_f32_32x32x16_bf16 v[112:127], v[{32+4*ks}:{35+4*ks}], v[{192+4*ks}:{195+4*ks}], {c1}')
    e('s_setprio 0')
    e.lab('K1_NOMFMA')
    if DIAG:
        e('s_memtime s[100:101]'); e('s_waitcnt lgkmcnt(0)'); e('s_lshl_b32 s101, s60, 2'); e('s_add_u32 s101, s101, 8'); e('s_mov_b32 m0, s101'); e('s_nop 1'); e('v_writelane_b32 v31, s100, m0')
    e('s_barrier')
    e.lab('K1_EPI')
    if DIAG:
        e('s_memtime s[100:101]'); e('s_waitcnt lgkmcnt(0)'); e('s_lshl_b32 s101, s60, 2'); e('s_add_u32 s101, s101, 9'); e('s_mov_b32 m0, s101'); e('s_nop 1'); e('v_writelane_b32 v31, s100, m0')
    e('s_cmp_ge_u32 s51, s37')
    e('s_cbranch_scc1 K1_NOEPI')
    e('s_add_u32 s50, s36, s51')
    e('s_lshl_b32 s59, s50, 13')
    e('s_nop 7')
    for g in range(4):
        rs=[4*g+q for q in range(4)]
        T=lambda q,k: 48+16*(g&1)+4*k+q
        for q,r in enumerate(rs): e(f'v_mul_f32 v{T(q,0)}, 0x{KAPPA:08x}, v{96+r}')
        for q,r in enumerate(rs): e(f'v_max_f32_e64 v{T(q,2)}, |v{112+r}|, s56')
        for q,r in enumerate(rs): e(f'v_cvt_pk_bf16_f32 v{T(q,1)}, v{T(q,0)}, 0')
        for q,r in enumerate(rs): e(f'v_add_u32 v{T(q,2)}, 0x8000, v{T(q,2)}')
        for q,r in enumerate(rs): e(f'v_sub_u32 v{T(q,0)}, v{T(q,2)}, v{T(q,1)}')
        for q,r in enumerate(rs): e(f'v_bfi_b32 v{T(q,1)}, s57, v{112+r}, v{T(q,1)}')
        for q,r in enumerate(rs): e(f'v_bfi_b32 v{96+r}, s58, v{T(q,0)}, v{T(q,1)}')
        for q,r in enumerate(rs): e(f'ds_write_b32 v5, v{96+r} offset:{((r&3)+8*(r>>2))*128}')
        if g>=1:
            e('s_waitcnt lgkmcnt(4)' if g==1 else 's_waitcnt lgkmcnt(5)')
            e(f'ds_read_b128 v[{32+4*(g-1)}:{35+4*(g-1)}], v7 offset:{(g-1)*1024}')
    e('s_waitcnt lgkmcnt(1)')
    e(f'ds_read_b128 v[44:47], v7 offset:3072')
    e('s_waitcnt lgkmcnt(0)')
    e('s_add_u32 s62, s51, 8')
    e('s_cmp_ge_u32 s62, s37')
    e('s_cselect_b32 s63, 0, 1')
    e('s_cbranch_scc1 K1_NODMA2')
    e('s_add_u32 s50, s36, s62')
    dma('s50', 's61')
    e.lab('K1_NODMA2')
    for a in range(4):
        e(f'buffer_store_dwordx4 v[{32+4*a}:{35+4*a}], v24, s[20:23], s59 offen{ST_FLAGS}')
        if a<3: e('s_add_u32 s59, s59, 2048')
    e('s_cmp_eq_u32 s60, 0')
    e('s_cbranch_scc1 K1_WT12')
    e('s_cmp_eq_u32 s63, 0')
    e('s_cbranch_scc1 K1_WT8')
    e('s_waitcnt vmcnt(16)')
    e('s_branch K1_EPID')
    e.lab('K1_WT12')
    e('s_waitcnt vmcnt(12)')
    e('s_branch K1_EPID')
    e.lab('K1_WT8')
    e('s_waitcnt vmcnt(8)')
    e('s_branch K1_EPID')
    e.lab('K1_NOEPI')
    e('s_waitcnt vmcnt(0)')
    e.lab('K1_EPID')
    if DIAG:
        e('s_memtime s[100:101]'); e('s_waitcnt lgkmcnt(0)'); e('s_lshl_b32 s101, s60, 2'); e('s_add_u32 s101, s101, 10'); e('s_mov_b32 m0, s101'); e('s_nop 1'); e('v_writelane_b32 v31, s100, m0')
    for k in range(8):
        e(f'v_xor_b32 v{16+k}, 0x10000, v{16+k}')
    e('v_xor_b32 v5, 0x10000, v5')
    e('v_xor_b32 v7, 0x10000, v7')
    e('s_xor_b32 s61, s61, 0x10000')
    e('s_add_u32 s60, s60, 1')
    e('s_cmp_lt_u32 s60, 4')
    e('s_cbranch_scc0 K1_LOOPD')
    e('s_barrier')
    e('s_branch K1_LOOP')
    e.lab('K1_LOOPD')
    e('s_cmp_ge_u32 s40, 4')
    e('s_cbranch_scc1 K1_GEND')
    e('s_barrier')
    e.lab('K1_GEND')
    if DIAG: e('s_waitcnt vmcnt(0)')
    STG.stamp(e,'end'); STG.stamp(e,'real1',real=True)
    STG.flush(e,"s26","s27","s40",2,4,(0,24))

def sort(e):
    e.c('================= SORT role =================')
    STS.stamp(e,'real0',real=True); STS.stamp(e,'start')
    HIST=0; RECS=256; EAS=10496
    e('s_load_dwordx2 s[24:25], s[0:1], 8')
    e('s_load_dwordx4 s[28:31], s[0:1], 16')
    e('s_load_dwordx2 s[26:27], s[0:1], 88')
    e('v_and_b32 v1, 63, v0')
    e('v_lshlrev_b32 v2, 2, v0')
    e('v_lshlrev_b32 v3, 5, v0')
    e('v_mov_b32 v4, 0')
    e('v_cmp_gt_u32 vcc, 64, v0')
    e('s_and_saveexec_b64 s[40:41], vcc')
    e(f'ds_write_b32 v2, v4 offset:{HIST}')
    e('s_mov_b64 exec, s[40:41]')
    e('s_mul_i32 s3, s2, 10000')
    e('s_mul_i32 s4, s2, 80000')
    e('s_waitcnt lgkmcnt(0)')
    e('s_add_u32 s8, s24, s4'); e('s_addc_u32 s9, s25, 0'); e('s_and_b32 s9, s9, 0xffff'); e('s_mov_b32 s10, 80000'); e('s_mov_b32 s11, 0x20000')
    e('s_add_u32 s12, s28, s3'); e('s_addc_u32 s13, s29, 0'); e('s_and_b32 s13, s13, 0xffff'); e('s_mov_b32 s14, 10000'); e('s_mov_b32 s15, 0x20000')
    e('s_add_u32 s16, s30, s3'); e('s_addc_u32 s17, s31, 0'); e('s_and_b32 s17, s17, 0xffff'); e('s_mov_b32 s18, 10000'); e('s_mov_b32 s19, 0x20000')
    e(f's_add_u32 s5, s4, {WS_EAP}')
    e('s_add_u32 s20, s26, s5'); e('s_addc_u32 s21, s27, 0'); e('s_and_b32 s21, s21, 0xffff'); e('s_mov_b32 s22, 80000'); e('s_mov_b32 s23, 0x20000')
    e(f's_add_u32 s5, s3, {WS_REC}')
    e('s_add_u32 s32, s26, s5'); e('s_addc_u32 s33, s27, 0'); e('s_and_b32 s33, s33, 0xffff'); e('s_mov_b32 s34, 10000'); e('s_mov_b32 s35, 0x20000')
    e(f's_add_u32 s36, s26, {WS_OFF}'); e('s_addc_u32 s37, s27, 0'); e('s_and_b32 s37, s37, 0xffff'); e(f's_mov_b32 s38, {NB*C*4}'); e('s_mov_b32 s39, 0x20000')
    STS.stamp(e,'kernarg')
    for r in range(5):
        e(f's_mov_b32 s6, {r*2048}')
        e(f'buffer_load_dword v{8+r}, v2, s[16:19], s6 offen')
    for r in range(5):
        e(f's_mov_b32 s6, {r*2048}')
        e(f'buffer_load_dword v{13+r}, v2, s[12:15], s6 offen')
    for r in range(5):
        e(f's_mov_b32 s6, {r*16384}')
        e(f'buffer_load_dwordx4 v[{32+8*r}:{35+8*r}], v3, s[8:11], s6 offen')
        e(f'buffer_load_dwordx4 v[{36+8*r}:{39+8*r}], v3, s[8:11], s6 offen offset:16')
    e('s_barrier')
    e('s_waitcnt vmcnt(10)')
    STS.stamp(e,'dst')
    e('s_mov_b32 s6, 26716')
    e('v_mov_b32 v4, 1')
    e('s_movk_i32 s7, 452')
    e('v_cmp_gt_u32 s[42:43], s7, v0')
    for r in range(5):
        e(f'v_mul_u32_u24 v{18+r}, s6, v{8+r}')
        e(f'v_lshrrev_b32 v{18+r}, 22, v{18+r}')
        e(f'v_mul_u32_u24 v5, 157, v{18+r}')
        e(f'v_sub_u32 v5, v{8+r}, v5')
        e(f'v_lshl_or_b32 v{13+r}, v{13+r}, 8, v5')
        e(f'v_lshlrev_b32 v{18+r}, 2, v{18+r}')
        if r==4: e('s_mov_b64 exec, s[42:43]')
        e(f'ds_add_rtn_u32 v{23+r}, v{18+r}, v4 offset:{HIST}')
    e('s_mov_b64 exec, -1')
    e('s_waitcnt lgkmcnt(0)')
    e('s_barrier')
    STS.stamp(e,'hist')
    e('v_lshlrev_b32 v5, 2, v1')
    e(f'ds_read_b32 v6, v5 offset:{HIST}')
    e('s_waitcnt lgkmcnt(0)')
    e('v_mov_b32 v7, v6')
    scan64(e, 7)
    e('v_sub_u32 v7, v7, v6')
    e('v_cmp_gt_u32 vcc, 64, v0')
    e('s_and_saveexec_b64 s[40:41], vcc')
    e('s_cbranch_execz K1_NOOFF')
    e('v_lshl_or_b32 v28, v6, 16, v7')
    e('v_lshlrev_b32 v29, 8, v1')
    e('s_lshl_b32 s6, s2, 2')
    e('buffer_store_dword v28, v29, s[36:39], s6 offen')
    e.lab('K1_NOOFF')
    e('s_mov_b64 exec, s[40:41]')
    for r in range(5):
        e(f'ds_bpermute_b32 v{8+r}, v{18+r}, v7')
    e('s_waitcnt lgkmcnt(0)')
    e('s_waitcnt vmcnt(0)')
    STS.stamp(e,'ea')
    for r in range(5):
        e(f'v_add_u32 v{8+r}, v{8+r}, v{23+r}')
        e(f'v_lshlrev_b32 v{18+r}, 2, v{8+r}')
        e(f'v_lshlrev_b32 v{23+r}, 5, v{8+r}')
        if r==4: e('s_mov_b64 exec, s[42:43]')
        e(f'ds_write_b32 v{18+r}, v{13+r} offset:{RECS}')
        e(f'ds_write_b128 v{23+r}, v[{32+8*r}:{35+8*r}] offset:{EAS}')
        e(f'ds_write_b128 v{23+r}, v[{36+8*r}:{39+8*r}] offset:{EAS+16}')
    e('s_mov_b64 exec, -1')
    e('s_waitcnt lgkmcnt(0)')
    e('s_barrier')
    STS.stamp(e,'scat')
    e('v_lshlrev_b32 v5, 4, v0')
    e(f'v_add_u32 v6, {7*8192}, v5')
    for a in range(10):
        if a<7: e(f'ds_read_b128 v[{32+4*a}:{35+4*a}], v5 offset:{EAS+a*8192}')
        else: e(f'ds_read_b128 v[{32+4*a}:{35+4*a}], v6 offset:{EAS+(a-7)*8192}')
    for a in range(2):
        e(f'ds_read_b128 v[{72+4*a}:{75+4*a}], v5 offset:{RECS+a*8192}')
    for a in range(10):
        e(f's_waitcnt lgkmcnt({11-a})')
        e(f's_mov_b32 s6, {a*8192}')
        e(f'buffer_store_dwordx4 v[{32+4*a}:{35+4*a}], v5, s[20:23], s6 offen{ST_FLAGS}')
    for a in range(2):
        e(f's_waitcnt lgkmcnt({1-a})')
        e(f's_mov_b32 s6, {a*8192}')
        e(f'buffer_store_dwordx4 v[{72+4*a}:{75+4*a}], v5, s[32:35], s6 offen{ST_FLAGS}')
    if DIAG: e('s_waitcnt vmcnt(0)')
    STS.stamp(e,'end'); STS.stamp(e,'real1',real=True)
    if DIAG:
        e('v_lshrrev_b32 v2, 6, v0'); e('s_nop 0'); e('v_readfirstlane_b32 s40, v2'); e('s_nop 3')
    STS.flush(e,"s26","s27","s40",2,4,(0,STS.n))
```

```python
from common import *
import os
EXP=os.environ.get('EXP','nobvpf')
OUTF=os.environ.get('OUTF',' nt')
NT=' nt' if 'nt' in os.environ.get('NT','nt') else ''

L_CNT=0; L_CUR=768; L_HIST=1536; L_TMAX=1792; L_BASE=2048; L_SB=2816; L_NODE=3072; L_FLAG=3840
L_ZROW=3872
L_IDX=4096; L_POS=19584; L_EA=35072
STEP_MAX=240; ROW_MAX=3584
K2_LDS=L_EA+ROW_MAX*32
DUMMY_IDX=10000*256

V_LANE=1; V_J16=2; V_EA=3; V_IDX=4; V_XOFF=5; V_C=6
V_IX=8
V_AOP=12
V_B=16
RAW=(32,48)
V_G=64; V_T=80; V_NUM=96; V_DEN=100; V_AU=104; V_X=108; V_AUN=110; V_XN=114
V_POSR=0; V_G8=118
V_N0=116; V_N1=117; V_XOFFN=119; V_TMP=120; V_N2=126; V_J8S=127
S_SL=3; S_BK=4; S_W=5
S_BV=8; S_AU=12; S_XS=16; S_OUT=20; S_REC=24; S_EAP=28; S_WC=32
S_EB4=36; S_CNT=44; S_EBL=52; S_MASK=84
S_REM=60; S_NP=61; S_LEFT=64; S_M16=65; S_RT=66
L_SY1=3844; L_SY2=3848
P_REC=32; P_DL=40; P_RK=48; P_BS=56; P_POS=64

def step(e, X, half, tag):
    raw=RAW[X]; oth=RAW[1-X]
    idx_off = L_IDX + (128 if X==0 else 192)
    pos_off = L_POS + (128 if X==0 else 192)
    e('s_waitcnt lgkmcnt(0)')
    if 'noadd' not in EXP:
        e(f'v_add_u32 v{V_POSR}, v{V_POSR}, v{V_G8}')
        for r in range(4):
            e(f'v_add_u32 v{V_IX+r}, v{V_IX+r}, v{V_J16}')
    if 'noload' not in EXP:
        for r in range(4):
            e(f'buffer_load_dwordx4 v[{oth+4*r}:{oth+4*r+3}], v{V_IX+r}, s[{S_BV}:{S_BV+3}], 0 offen')
    if 'nolds' not in EXP:
        e(f'ds_read_b128 v[{V_IX}:{V_IX+3}], v{V_IDX} offset:{idx_off}')
    e('s_waitcnt vmcnt(4)')
    rs = (0,1) if half else (0,1,2,3)
    def unp(i):
        for r in rs: e(f'v_lshlrev_b32 v{V_G+4*i+r}, 16, v{raw+4*r+i}')
    def mf(i):
        e(f'v_mfma_f32_16x16x32_bf16 v[{V_G+4*i}:{V_G+4*i+3}], v[{V_AOP}:{V_AOP+3}], v[{V_B+4*i}:{V_B+4*i+3}], v[{V_G+4*i}:{V_G+4*i+3}]')
    unp(0); unp(1); mf(0); unp(2); mf(1); unp(3); mf(2); e('s_nop 0'); mf(3)
    if 'nolds' not in EXP:
        e(f'ds_read_b64 v[{V_AOP}:{V_AOP+1}], v{V_POSR}')
        e(f'ds_read_b32 v{V_POSR}, v{V_EA} offset:{pos_off}')
    if half: e('s_nop 0')
    for i in range(4):
        for r in rs:
            e(f'v_exp_f32_e64 v{V_T+4*r+i}, v{V_G+4*i+r} clamp')
    for r in rs:
        for ii in range(2):
            t=V_T+4*r+2*ii
            e(f'v_pk_add_f32 v[{t}:{t+1}], v[{t}:{t+1}], v[{V_C}:{V_C+1}]')
    for p in range(1 if half else 2):
        for ii in range(2):
            a=V_T+4*(2*p)+2*ii; b=V_T+4*(2*p+1)+2*ii
            va=raw+4*(2*p)+2*ii; vb=raw+4*(2*p+1)+2*ii
            P=V_G+6*ii; Nn=P+2; S=P+4
            e(f'v_pk_mul_f32 v[{P}:{P+1}], v[{a}:{a+1}], v[{b}:{b+1}]')
            e(f'v_pk_mul_f32 v[{Nn}:{Nn+1}], v[{va}:{va+1}], v[{b}:{b+1}]')
            e(f'v_rcp_f32 v{P}, v{P}')
            e(f'v_rcp_f32 v{P+1}, v{P+1}')
            e(f'v_pk_fma_f32 v[{Nn}:{Nn+1}], v[{vb}:{vb+1}], v[{a}:{a+1}], v[{Nn}:{Nn+1}]')
            e(f'v_pk_add_f32 v[{S}:{S+1}], v[{a}:{a+1}], v[{b}:{b+1}]')
            nu=V_NUM+2*ii; de=V_DEN+2*ii
            e(f'v_pk_fma_f32 v[{nu}:{nu+1}], v[{Nn}:{Nn+1}], v[{P}:{P+1}], v[{nu}:{nu+1}]')
            e(f'v_pk_fma_f32 v[{de}:{de+1}], v[{S}:{S+1}], v[{P}:{P+1}], v[{de}:{de+1}]')
    if X==1 and 'benchloop' not in EXP:
        e(f'v_add_u32 v{V_IDX}, 128, v{V_IDX}')
        e(f'v_add_u32 v{V_EA}, 128, v{V_EA}')

def finalize(e):
    T=V_TMP
    for i in range(4): e(f'v_rcp_f32 v{T+i}, v{V_DEN+i}')
    e('s_nop 0')
    for i in range(4): e(f'v_fma_f32 v{V_NUM+i}, v{V_NUM+i}, v{T+i}, v{V_AU+i}')
    for i in range(4): e(f'v_max_f32 v{V_NUM+i}, 0, v{V_NUM+i}')
    e(f'v_lshlrev_b32 v{T}, 16, v{V_X}')
    e(f'v_and_b32 v{T+1}, 0xffff0000, v{V_X}')
    e(f'v_lshlrev_b32 v{T+2}, 16, v{V_X+1}')
    e(f'v_and_b32 v{T+3}, 0xffff0000, v{V_X+1}')
    for i in range(4): e(f'v_add_f32 v{V_NUM+i}, v{V_NUM+i}, v{T+i}')
    e(f'v_cvt_pk_bf16_f32 v{T+4}, v{V_NUM}, v{V_NUM+1}')
    e(f'v_cvt_pk_bf16_f32 v{T+5}, v{V_NUM+2}, v{V_NUM+3}')
    e(f'buffer_store_dwordx2 v[{T+4}:{T+5}], v{V_XOFF}, s[{S_OUT}:{S_OUT+3}], 0 offen{OUTF}')

def prefetch_next(e):
    e(f'v_lshl_add_u32 v{V_TMP}, v{V_N0}, 8, v{V_J16}')
    e(f'v_lshl_add_u32 v{V_XOFFN}, v{V_N0}, 9, v{V_J8S}')
    e(f'buffer_load_dwordx4 v[{V_AUN}:{V_AUN+3}], v{V_TMP}, s[{S_AU}:{S_AU+3}], 0 offen{NT}')
    e(f'buffer_load_dwordx2 v[{V_XN}:{V_XN+1}], v{V_XOFFN}, s[{S_XS}:{S_XS+3}], 0 offen{NT}')
    e(f'v_mov_b32 v{V_N0}, v{V_N1}')
    e(f'v_mov_b32 v{V_N1}, v{V_N2}')
    e(f'v_mov_b32 v{V_N2}, 0x2710')

def setup(e):
    for i in range(4): e(f'v_mov_b32 v{V_AU+i}, v{V_AUN+i}')
    for i in range(2): e(f'v_mov_b32 v{V_X+i}, v{V_XN+i}')
    e(f'v_mov_b32 v{V_XOFF}, v{V_XOFFN}')
    for i in range(4):
        e(f'v_bfi_b32 v{V_B+4*i+2}, s{S_M16}, v{V_AU+i}, v{V_B+4*i+2}')
    for i in range(4): e(f'v_mov_b32 v{V_NUM+i}, 0')
    for i in range(4): e(f'v_mov_b32 v{V_DEN+i}, 0x{EPSS:08x}')
    prefetch_next(e)

def next_task(e, tag):
    e.lab(f'K2_NT{tag}')
    if DIAG:
        e('s_memtime s[100:101]'); e('s_waitcnt lgkmcnt(0)'); e(f's_add_u32 s101, s{S_LEFT}, 20'); e('s_mov_b32 m0, s101'); e('s_nop 1'); e('v_writelane_b32 v1, s100, m0')
    e('s_waitcnt vmcnt(0)')
    finalize(e)
    e.lab(f'K2_NTS{tag}')
    e(f's_cmp_eq_u32 s{S_LEFT}, 0')
    e('s_cbranch_scc1 K2_END')
    e(f's_sub_u32 s{S_LEFT}, s{S_LEFT}, 1')
    e('s_waitcnt vmcnt(0)')
    setup(e)
    e(f's_mov_b32 s{S_REM}, s{S_NP}')
    e(f's_mov_b32 s{S_NP}, s{S_NP+1}')
    e(f's_mov_b32 s{S_NP+1}, s{S_NP+2}')
    e(f's_cmp_le_i32 s{S_REM}, 0')
    e(f's_cbranch_scc1 K2_NT{tag}')

def phase2_round(e, rbase):
    for i in range(8):
        e(f's_mov_b64 exec, s[{S_MASK+2*i}:{S_MASK+2*i+1}]')
        e(f'ds_add_rtn_u32 v{P_RK+i}, v{P_DL+i}, v{V_TMP} offset:{L_CUR}')
        e(f'ds_read_b32 v{P_BS+i}, v{P_DL+i} offset:{L_BASE}')
    e('s_mov_b64 exec, -1')
    for i in range(8):
        if rbase: e(f's_add_u32 s6, s{S_EBL+i}, {rbase}')
        e(f'v_add_u32 v{P_POS+i}, {"s6" if rbase else "s%d"%(S_EBL+i)}, v125')
        e(f'v_and_b32 v{P_REC+i}, 0xffffff00, v{P_REC+i}')
    for i in range(8):
        e(f's_waitcnt lgkmcnt({min(15,14-2*i)})')
        e(f'v_lshrrev_b32 v{V_TMP+1}, 2, v{P_RK+i}')
        e(f'v_mad_u32_u24 v{V_TMP+1}, v{V_TMP+1}, 12, v{P_RK+i}')
        e(f'v_add_u32 v{P_RK+i}, v{V_TMP+1}, v{P_BS+i}')
        e(f'v_lshlrev_b32 v{P_RK+i}, 2, v{P_RK+i}')
    for i in range(8):
        e(f's_mov_b64 exec, s[{S_MASK+2*i}:{S_MASK+2*i+1}]')
        if 'nogather' not in EXP: e(f'ds_write_b32 v{P_RK+i}, v{P_REC+i} offset:{L_IDX}')
        e(f'ds_write_b32 v{P_RK+i}, v{P_POS+i} offset:{L_POS}')
    e('s_mov_b64 exec, -1')

def ea_dma(e, cnt_sgpr, goff_sgpr, loff_sgpr):
    e(f's_lshl_b32 s6, {cnt_sgpr}, 1')
    e(f'v_cmp_gt_i32 vcc, s6, v{V_LANE}')
    e(f's_mov_b32 m0, {loff_sgpr}')
    e('s_mov_b64 exec, vcc')
    e(f'buffer_load_dwordx4 v123, s[{S_EAP}:{S_EAP+3}], {goff_sgpr} offen lds')
    e('s_mov_b64 exec, -1')
    e('s_sub_i32 s6, s6, 64')
    e(f'v_cmp_gt_i32 vcc, s6, v{V_LANE}')
    e('s_nop 0')
    e('s_mov_b64 exec, vcc')
    e(f'buffer_load_dwordx4 v123, s[{S_EAP}:{S_EAP+3}], {goff_sgpr} offen offset:1024 lds')
    e('s_mov_b64 exec, -1')

def lds_wait(e, addr, val, tag):
    e(f'v_mov_b32 v{V_TMP+2}, {addr}')
    e.lab(f'K2_W{tag}')
    e(f'ds_read_b32 v{V_TMP+1}, v{V_TMP+2}')
    e('s_waitcnt lgkmcnt(0)')
    e(f'v_readfirstlane_b32 s6, v{V_TMP+1}')
    e('s_nop 1')
    e(f's_cmp_ge_u32 s6, {val}')
    e(f's_cbranch_scc1 K2_WD{tag}')
    e('s_sleep 1')
    e(f's_branch K2_W{tag}')
    e.lab(f'K2_WD{tag}')

def lds_arrive(e, addr):
    e('s_waitcnt lgkmcnt(0)')
    e(f'v_mov_b32 v{V_TMP+2}, {addr}')
    e('s_mov_b64 exec, 1')
    e(f'ds_add_u32 v{V_TMP+2}, v{V_TMP}')
    e('s_mov_b64 exec, -1')

def wc_prep(e):
    for i in range(4):
        for kk in range(4):
            srcr=80+2*kk+(i>>1)
            if i&1: e(f'v_and_b32 v{88+kk}, 0xffff0000, v{srcr}')
            else:   e(f'v_lshlrev_b32 v{88+kk}, 16, v{srcr}')
            e(f'v_mul_f32 v{88+kk}, 0x{KAPPA:08x}, v{88+kk}')
        e(f'v_cvt_pk_bf16_f32 v{V_B+4*i}, v88, v89')
        e(f'v_cvt_pk_bf16_f32 v{V_B+4*i+1}, v90, v91')
        e(f'v_mov_b32 v{V_B+4*i+2}, 0xc1400000')
        e(f'v_mov_b32 v{V_B+4*i+3}, 0')
    e(f'v_bfe_u32 v10, v{V_LANE}, 2, 2')
    e('v_cmp_eq_u32 vcc, v10, v9')
    e('v_mov_b32 v10, 0x3f800000')
    e('v_mov_b32 v11, 0x3f803f80')
    e(f'v_cndmask_b32 v{V_AOP+2}, v10, v11, vcc')
    e(f'v_mov_b32 v{V_AOP+3}, 0')
    e(f'v_mov_b32 v{V_C}, 0x{CSMALL:08x}')
    e(f'v_mov_b32 v{V_C+1}, 0x{CSMALL:08x}')
    e(f's_mov_b32 s{S_M16}, 0xffff')

MAPM=int(os.environ.get('MAPM','4'))
PT=[int(x) for x in os.environ.get('PT','6,4,2').split(',')]
DIAG=False
PRIO=True
ST=None
SV=119
def gen_k2(e, name):
    global ST
    ST=Stamps(DIAG,SV,kern=1)
    e.raw(f'.globl {name}')
    e.raw('.p2align 8')
    e.raw(f'.type {name},@function')
    e.lab(name)
    e('s_cmp_ge_u32 s2, 256')
    e('s_cbranch_scc1 K2_END2')
    ST.stamp(e,'real0',real=True); ST.stamp(e,'start')
    e('s_load_dwordx2 s[68:69], s[0:1], 0')
    e('s_load_dwordx2 s[70:71], s[0:1], 48')
    e('s_load_dwordx2 s[72:73], s[0:1], 72')
    e('s_load_dwordx2 s[74:75], s[0:1], 88')
    e('s_and_b32 s6, s2, 7')
    e('s_lshr_b32 s7, s2, 3')
    if MAPM==4:
        e(f's_lshr_b32 s{S_SL}, s6, 1')
        e('s_and_b32 s6, s6, 1')
        e('s_lshl_b32 s7, s7, 1')
        e(f's_or_b32 s{S_BK}, s7, s6')
    elif MAPM==2:
        e(f's_and_b32 s{S_SL}, s6, 1'); e(f's_lshl_b32 s{S_SL}, s{S_SL}, 1')
        e(f's_and_b32 s{S_BK}, s7, 1'); e(f's_or_b32 s{S_SL}, s{S_SL}, s{S_BK}')
        e('s_lshr_b32 s7, s7, 1'); e('s_lshl_b32 s7, s7, 2'); e('s_lshr_b32 s6, s6, 1')
        e(f's_or_b32 s{S_BK}, s7, s6')
    else:
        e(f's_and_b32 s{S_SL}, s7, 3')
        e('s_lshr_b32 s7, s7, 2'); e('s_lshl_b32 s7, s7, 3')
        e(f's_or_b32 s{S_BK}, s7, s6')
    e(f'v_and_b32 v{V_LANE}, 63, v0')
    e('v_lshrrev_b32 v8, 6, v0')
    e('v_lshlrev_b32 v12, 4, v0')
    e(f'v_readfirstlane_b32 s{S_W}, v8')
    e.c('---- LDS init')
    e('v_mov_b32 v16, 0'); e('v_mov_b32 v17, 0'); e('v_mov_b32 v18, 0'); e('v_mov_b32 v19, 0')
    e(f'v_mov_b32 v20, 0x{DUMMY_IDX:x}'); e('v_mov_b32 v21, v20'); e('v_mov_b32 v22, v20'); e('v_mov_b32 v23, v20')
    e(f'v_mov_b32 v24, {L_ZROW}'); e('v_mov_b32 v25, v24'); e('v_mov_b32 v26, v24'); e('v_mov_b32 v27, v24')
    e('s_movk_i32 s6, 968')
    e('v_cmp_gt_u32 vcc, s6, v0')
    e('s_and_saveexec_b64 s[6:7], vcc')
    e(f'ds_write_b128 v12, v[20:23] offset:{L_IDX}')
    e(f'ds_write_b128 v12, v[24:27] offset:{L_POS}')
    e('s_mov_b64 exec, s[6:7]')
    e('v_cmp_gt_u32 vcc, 0x100, v0')
    e('s_and_saveexec_b64 s[6:7], vcc')
    e('ds_write_b128 v12, v[16:19]')
    e('s_mov_b64 exec, s[6:7]')
    e(f'v_lshlrev_b32 v124, 2, v{V_LANE}')
    e(f'v_lshlrev_b32 v125, 5, v{V_LANE}')
    e(f'v_lshlrev_b32 v123, 4, v{V_LANE}')
    e(f'v_and_b32 v8, 15, v{V_LANE}')
    e(f'v_lshrrev_b32 v9, 4, v{V_LANE}')
    e(f'v_lshlrev_b32 v{V_J16}, 4, v8')
    e(f'v_lshlrev_b32 v{V_G8}, 3, v9')
    e(f's_lshl_b32 s6, s{S_SL}, 7')
    e(f'v_lshlrev_b32 v{V_J8S}, 3, v8')
    e(f'v_add_u32 v{V_J8S}, s6, v{V_J8S}')
    e(f'v_lshl_add_u32 v10, v9, 11, v{V_J8S}')
    e(f'v_mov_b32 v{V_TMP}, 1')
    e('s_waitcnt lgkmcnt(0)')
    ST.stamp(e,'karg')
    e(f's_add_u32 s76, s74, {WS_OFF}'); e('s_addc_u32 s77, s75, 0'); e('s_and_b32 s77, s77, 0xffff')
    e(f's_mov_b32 s78, {NB*C*4}'); e('s_mov_b32 s79, 0x20000')
    e(f's_lshl_b32 s6, s{S_BK}, 8')
    e('buffer_load_dword v96, v124, s[76:79], s6 offen')
    srd(e, S_WC, 's70', 's71', 8192)
    for kk in range(4):
        e(f'buffer_load_dwordx2 v[{80+2*kk}:{81+2*kk}], v10, s[{S_WC}:{S_WC+3}], 0 offen offset:{kk*512}')
    e('s_barrier')
    e.c('---- SRDs')
    e(f's_mul_i32 s6, s{S_SL}, {BV_SLICE}')
    e(f's_add_u32 s{S_BV}, s74, s6'); e(f's_addc_u32 s{S_BV+1}, s75, 0'); e(f's_and_b32 s{S_BV+1}, s{S_BV+1}, 0xffff')
    e(f's_mov_b32 s{S_BV+2}, {BV_SLICE}'); e(f's_mov_b32 s{S_BV+3}, 0x20000')
    e(f's_mul_i32 s6, s{S_SL}, {AU_SLICE}'); e(f's_add_u32 s6, s6, {WS_AU}')
    e(f's_add_u32 s{S_AU}, s74, s6'); e(f's_addc_u32 s{S_AU+1}, s75, 0'); e(f's_and_b32 s{S_AU+1}, s{S_AU+1}, 0xffff')
    e(f's_mov_b32 s{S_AU+2}, {AU_SLICE}'); e(f's_mov_b32 s{S_AU+3}, 0x20000')
    srd(e, S_XS, 's68', 's69', 5120000)
    srd(e, S_OUT, 's72', 's73', 5120000)
    e(f's_add_u32 s{S_REC}, s74, {WS_REC}'); e(f's_addc_u32 s{S_REC+1}, s75, 0'); e(f's_and_b32 s{S_REC+1}, s{S_REC+1}, 0xffff')
    e(f's_mov_b32 s{S_REC+2}, {E*4}'); e(f's_mov_b32 s{S_REC+3}, 0x20000')
    e(f's_add_u32 s{S_EAP}, s74, {WS_EAP}'); e(f's_addc_u32 s{S_EAP+1}, s75, 0'); e(f's_and_b32 s{S_EAP+1}, s{S_EAP+1}, 0xffff')
    e(f's_mov_b32 s{S_EAP+2}, {E*32}'); e(f's_mov_b32 s{S_EAP+3}, 0x20000')
    e.c('---- segments: wave handles chunks 8*(w&7)+i')
    e('s_waitcnt vmcnt(4)')
    ST.stamp(e,'off')
    e('v_lshrrev_b32 v97, 16, v96')
    e('v_mov_b32 v98, v97')
    scan64(e,98)
    e('v_readlane_b32 s80, v98, 63')
    e('v_sub_u32 v98, v98, v97')
    e(f's_and_b32 s7, s{S_W}, 7')
    e('s_lshl_b32 s7, s7, 3')
    for i in range(8):
        e(f's_add_u32 s6, s7, {i}')
        e(f'v_readlane_b32 s{S_CNT+i}, v96, s6')
        e(f'v_readlane_b32 s{S_EBL+i}, v98, s6')
    e('s_nop 1')
    for i in range(8):
        e(f's_add_u32 s6, s7, {i}')
        e(f's_mul_i32 s6, s6, {CE}')
        e(f's_and_b32 s81, s{S_CNT+i}, 0xffff')
        e('s_add_u32 s6, s6, s81')
        e(f's_lshl_b32 s{S_EB4+i}, s6, 2')
        e(f's_lshr_b32 s{S_CNT+i}, s{S_CNT+i}, 16')
        e(f's_lshl_b32 s{S_EBL+i}, s{S_EBL+i}, 5')
        e(f's_add_u32 s{S_EBL+i}, s{S_EBL+i}, {L_EA}')
    e(f's_max_u32 s78, s{S_CNT}, s{S_CNT+1}')
    for i in range(2,8): e(f's_max_u32 s78, s78, s{S_CNT+i}')
    e(f's_cmp_gt_u32 s80, {ROW_MAX}')
    e('s_cselect_b32 s80, 1, 0')
    e('s_cbranch_scc1 K2_B3')
    e(f's_cmp_ge_u32 s{S_W}, 8')
    e('s_cbranch_scc1 K2_LOADER')
    e.c('======== sorter waves 0..7')
    if 'nosort' in EXP: e('s_branch K2_B3P')
    e('s_setprio 2')
    for i in range(8):
        e(f'v_cmp_gt_i32 s[{S_MASK+2*i}:{S_MASK+2*i+1}], s{S_CNT+i}, v{V_LANE}')
    for i in range(8):
        e(f's_mov_b64 exec, s[{S_MASK+2*i}:{S_MASK+2*i+1}]')
        e(f'buffer_load_dword v{P_REC+i}, v124, s[{S_REC}:{S_REC+3}], s{S_EB4+i} offen')
    e('s_mov_b64 exec, -1')
    e('s_waitcnt vmcnt(8)')
    wc_prep(e)
    for i in range(8):
        e(f's_waitcnt vmcnt({7-i})')
        e(f'v_and_b32 v{P_DL+i}, 0xff, v{P_REC+i}')
        e(f'v_lshlrev_b32 v{P_DL+i}, 2, v{P_DL+i}')
        e(f's_mov_b64 exec, s[{S_MASK+2*i}:{S_MASK+2*i+1}]')
        e(f'ds_add_u32 v{P_DL+i}, v{V_TMP} offset:{L_CNT}')
        e('s_mov_b64 exec, -1')
    ST.stamp(e,'rec')
    e('s_mov_b32 s79, 64')
    e.lab('K2_P1X')
    e('s_cmp_ge_u32 s79, s78')
    e('s_cbranch_scc1 K2_P1XD')
    for i in range(8):
        e(f's_sub_i32 s6, s{S_CNT+i}, s79')
        e(f'v_cmp_gt_i32 s[82:83], s6, v{V_LANE}')
        e('s_lshl_b32 s7, s79, 2')
        e(f's_add_u32 s7, s7, s{S_EB4+i}')
        e('s_mov_b64 exec, s[82:83]')
        e(f'buffer_load_dword v{V_TMP+1}, v124, s[{S_REC}:{S_REC+3}], s7 offen')
        e('s_waitcnt vmcnt(0)')
        e(f'v_and_b32 v{V_TMP+1}, 0xff, v{V_TMP+1}')
        e(f'v_lshlrev_b32 v{V_TMP+1}, 2, v{V_TMP+1}')
        e(f'ds_add_u32 v{V_TMP+1}, v{V_TMP} offset:{L_CNT}')
        e('s_mov_b64 exec, -1')
    e('s_add_u32 s79, s79, 64')
    e('s_branch K2_P1X')
    e.lab('K2_P1XD')
    lds_arrive(e, L_SY1)
    e(f's_cmp_lg_u32 s{S_W}, 0')
    e('s_cbranch_scc1 K2_NODE_DONE')
    e.c('---- node phase (wave 0)')
    lds_wait(e, L_SY1, 8, 'a')
    ST.stamp(e,'sy1')
    for k in range(3): e(f'ds_read_b32 v{96+k}, v124 offset:{L_CNT+256*k}')
    e(f's_mul_i32 s82, s{S_BK}, {BN}')
    e(f's_sub_u32 s7, {N}, s82')
    e(f's_min_u32 s7, s7, {BN}')
    e('s_waitcnt lgkmcnt(0)')
    for k in range(3):
        e(f'v_add_u32 v{99+k}, 1, v{96+k}')
        e(f'v_lshrrev_b32 v{99+k}, 1, v{99+k}')
        e(f'v_min_u32 v{102+k}, 62, v{99+k}')
        e(f'v_add_u32 v{102+k}, 1, v{102+k}')
        e(f'v_add_u32 v115, {64*k}, v{V_LANE}')
        e(f'v_cmp_gt_u32 vcc, s7, v115')
        e('s_nop 1')
        e(f'v_cndmask_b32 v{102+k}, 0, v{102+k}, vcc')
        e(f'v_lshlrev_b32 v{102+k}, 2, v{102+k}')
        e(f'ds_add_rtn_u32 v{105+k}, v{102+k}, v{V_TMP} offset:{L_HIST}')
    e('s_waitcnt lgkmcnt(0)')
    e('v_sub_u32 v108, 252, v124')
    e(f'ds_read_b32 v109, v108 offset:{L_HIST}')
    e('s_waitcnt lgkmcnt(0)')
    e('v_mov_b32 v110, v109')
    scan64(e,110)
    e('v_sub_u32 v110, v110, v109')
    for k in range(3):
        e(f'v_sub_u32 v{102+k}, 252, v{102+k}')
        e(f'ds_bpermute_b32 v{111+k}, v{102+k}, v110')
    e('s_mov_b32 s6, s82')
    e('s_waitcnt lgkmcnt(0)')
    for k in range(3):
        e(f'v_add_u32 v{111+k}, v{111+k}, v{105+k}')
        e(f'v_lshrrev_b32 v114, 2, v{111+k}')
        e(f'v_and_b32 v{105+k}, 3, v{111+k}')
        e(f'v_lshrrev_b32 v115, 4, v114')
        e(f'v_and_b32 v114, 15, v114')
        e(f'v_bfe_i32 v116, v115, 0, 1')
        e(f'v_and_b32 v116, 15, v116')
        e(f'v_xor_b32 v114, v114, v116')
        e(f'v_mad_u32_u24 v114, v114, 3, v115')
        e(f'v_lshlrev_b32 v{102+k}, 2, v114')
        e(f'ds_max_u32 v{102+k}, v{99+k} offset:{L_TMAX}')
        e(f'v_add_u32 v115, {64*k}, v{V_LANE}')
        e(f'v_cmp_gt_u32 vcc, s7, v115')
        e(f'v_add_u32 v115, s6, v115')
        e(f'v_mov_b32 v116, 0x2710')
        e(f'v_cndmask_b32 v115, v116, v115, vcc')
        e(f'v_lshlrev_b32 v116, 2, v{102+k}')
        e(f'v_lshl_add_u32 v116, v{105+k}, 2, v116')
        e(f'ds_write_b32 v116, v115 offset:{L_NODE}')
    e('s_waitcnt lgkmcnt(0)')
    e(f'ds_read_b32 v108, v124 offset:{L_TMAX}')
    e('s_waitcnt lgkmcnt(0)')
    e('v_add_u32 v108, 1, v108')
    e('v_lshrrev_b32 v108, 1, v108')
    e('v_mov_b32 v109, v108')
    scan64(e,109)
    e('v_readlane_b32 s6, v109, 63')
    e('v_sub_u32 v109, v109, v108')
    e(f'ds_write_b32 v124, v109 offset:{L_SB}')
    for k in range(3):
        e(f'ds_bpermute_b32 v{111+k}, v{102+k}, v109')
    e(f's_cmp_gt_u32 s6, {STEP_MAX}')
    e('s_cselect_b32 s6, 1, 0')
    e('v_mov_b32 v108, s6')
    e(f'v_mov_b32 v110, {L_FLAG}')
    e('ds_write_b32 v110, v108')
    e('s_waitcnt lgkmcnt(0)')
    for k in range(3):
        e(f'v_lshlrev_b32 v{111+k}, 4, v{111+k}')
        e(f'v_lshl_add_u32 v{111+k}, v{105+k}, 2, v{111+k}')
        e(f'ds_write_b32 v124, v{111+k} offset:{L_BASE+256*k}')
    lds_arrive(e, L_SY2)
    e.lab('K2_NODE_DONE')
    lds_wait(e, L_SY2, 1, 'b')
    ST.stamp(e,'sy2')
    e(f'v_mov_b32 v110, {L_FLAG}')
    e('ds_read_b32 v108, v110')
    e('s_waitcnt lgkmcnt(0)')
    e('v_readfirstlane_b32 s6, v108')
    e('s_nop 1')
    e('s_cmp_lg_u32 s6, 0')
    e('s_cbranch_scc1 K2_B3P')
    e.c('---- phase 2')
    phase2_round(e, None)
    e('s_mov_b32 s79, 64')
    e.lab('K2_P2X')
    e('s_cmp_ge_u32 s79, s78')
    e('s_cbranch_scc1 K2_BVPF')
    e('s_waitcnt lgkmcnt(0)')
    for i in range(8):
        e(f's_sub_i32 s81, s{S_CNT+i}, s79')
        e(f'v_cmp_gt_i32 s[{S_MASK+2*i}:{S_MASK+2*i+1}], s81, v{V_LANE}')
        e('s_lshl_b32 s7, s79, 2')
        e(f's_add_u32 s7, s7, s{S_EB4+i}')
        e(f's_mov_b64 exec, s[{S_MASK+2*i}:{S_MASK+2*i+1}]')
        e(f'buffer_load_dword v{P_REC+i}, v124, s[{S_REC}:{S_REC+3}], s7 offen')
        e('s_mov_b64 exec, -1')
    e('s_waitcnt vmcnt(0)')
    for i in range(8):
        e(f'v_and_b32 v{P_DL+i}, 0xff, v{P_REC+i}')
        e(f'v_lshlrev_b32 v{P_DL+i}, 2, v{P_DL+i}')
    e('s_lshl_b32 s7, s79, 5')
    phase2_round(e, 's7')
    e('s_add_u32 s79, s79, 64')
    e('s_branch K2_P2X')
    e.lab('K2_BVPF')
    if 'nobvpf' in EXP: e('s_branch K2_B3P')
    e('s_lshr_b32 s6, s2, 3')
    e('s_mul_i32 s6, s6, 80000')
    e(f's_mul_i32 s7, s{S_W}, 10240')
    e('s_add_u32 s6, s6, s7')
    e(f'v_lshlrev_b32 v{V_TMP+1}, 7, v{V_LANE}')
    e(f'buffer_load_dword v{V_TMP+2}, v{V_TMP+1}, s[{S_BV}:{S_BV+3}], s6 offen')
    e('s_add_u32 s6, s6, 8192')
    e('s_mov_b64 exec, 0xffff')
    e(f'buffer_load_dword v{V_TMP+3}, v{V_TMP+1}, s[{S_BV}:{S_BV+3}], s6 offen')
    e('s_mov_b64 exec, -1')
    e('s_setprio 0')
    e('s_waitcnt lgkmcnt(0)')
    ST.stamp(e,'preB3')
    e('s_branch K2_B3')
    e.c('======== loader waves 8..15')
    e.lab('K2_LOADER')
    e('s_mov_b32 s79, 0')
    e.lab('K2_LDL')
    for i in range(8):
        e(f's_sub_i32 s81, s{S_CNT+i}, s79')
        e('s_lshl_b32 s7, s79, 5')
        e(f's_lshl_b32 s82, s{S_EB4+i}, 3')
        e('s_add_u32 s82, s82, s7')
        e(f's_add_u32 s83, s7, s{S_EBL+i}')
        ea_dma(e, 's81', 's82', 's83')
    e('s_add_u32 s79, s79, 64')
    e('s_cmp_lt_u32 s79, s78')
    e('s_cbranch_scc1 K2_LDL')
    ST.stamp(e,'dmai')
    e('s_waitcnt vmcnt(16)')
    wc_prep(e)
    e.lab('K2_B3P')
    e('s_setprio 0')
    e('s_waitcnt lgkmcnt(0) vmcnt(0)')
    ST.stamp(e,'preB3')
    e.lab('K2_B3')
    e('s_barrier')
    ST.stamp(e,'B3')
    e(f'v_mov_b32 v110, {L_FLAG}')
    e('ds_read_b32 v108, v110')
    e('s_waitcnt lgkmcnt(0)')
    e('v_readfirstlane_b32 s6, v108')
    e('s_nop 1')
    e('s_or_b32 s6, s6, s80')
    e('s_cmp_lg_u32 s6, 0')
    e('s_cbranch_scc1 K2_SLOW')
    e.c('---- main init')
    if 'nomain' in EXP:
        ST.stamp(e,'init'); ST.flush(e,'s74','s75',f's{S_W}',V_TMP,76,(0,ST.n)); e('s_branch K2_END2')
    e(f'v_lshrrev_b32 v9, 4, v{V_LANE}')
    e(f's_mul_i32 s6, s{S_W}, 12')
    e('v_mov_b32 v10, s6')
    e(f'ds_read_b32 v96, v10 offset:{L_SB}')
    e(f'ds_read_b32 v97, v10 offset:{L_TMAX}')
    e(f'ds_read_b32 v98, v10 offset:{L_TMAX+4}')
    e(f'ds_read_b32 v99, v10 offset:{L_TMAX+8}')
    e(f's_mul_i32 s6, s{S_W}, 48')
    e('v_lshlrev_b32 v11, 2, v9')
    e('v_add_u32 v11, s6, v11')
    e(f'ds_read_b32 v{V_N0}, v11 offset:{L_NODE}')
    e(f'ds_read_b32 v{V_N1}, v11 offset:{L_NODE+16}')
    e(f'ds_read_b32 v{V_N2}, v11 offset:{L_NODE+32}')
    e('s_waitcnt lgkmcnt(0)')
    e('v_readfirstlane_b32 s6, v96')
    e(f'v_readfirstlane_b32 s{S_NP}, v97')
    e(f'v_readfirstlane_b32 s{S_NP+1}, v98')
    e(f'v_readfirstlane_b32 s{S_NP+2}, v99')
    e('s_nop 3')
    e(f's_add_u32 s{S_RT}, s{S_NP}, 1'); e(f's_lshr_b32 s{S_RT}, s{S_RT}, 1')
    e(f's_add_u32 s7, s{S_NP+1}, 1'); e('s_lshr_b32 s7, s7, 1'); e(f's_add_u32 s{S_RT}, s{S_RT}, s7')
    e(f's_add_u32 s7, s{S_NP+2}, 1'); e('s_lshr_b32 s7, s7, 1'); e(f's_add_u32 s{S_RT}, s{S_RT}, s7')
    e('s_lshl_b32 s7, s6, 6')
    e(f'v_lshlrev_b32 v{V_IDX}, 4, v9')
    e(f'v_add_u32 v{V_IDX}, s7, v{V_IDX}')
    e(f'v_and_b32 v10, 15, v{V_LANE}')
    e(f'v_lshlrev_b32 v{V_EA}, 2, v10')
    e(f'v_add_u32 v{V_EA}, s7, v{V_EA}')
    e(f'ds_read_b128 v[{V_IX}:{V_IX+3}], v{V_IDX} offset:{L_IDX}')
    e(f'ds_read_b32 v{V_POSR}, v{V_EA} offset:{L_POS}')
    ST.stamp(e,'init')
    ST.flush(e,'s74','s75',f's{S_W}',V_TMP,76,(0,ST.n))
    nflushed=ST.n
    prefetch_next(e)
    e('s_waitcnt lgkmcnt(0)')
    for r in range(4):
        e(f'v_add_u32 v{V_IX+r}, v{V_IX+r}, v{V_J16}')
    for r in range(4):
        e(f'buffer_load_dwordx4 v[{RAW[0]+4*r}:{RAW[0]+4*r+3}], v{V_IX+r}, s[{S_BV}:{S_BV+3}], 0 offen')
    e(f'ds_read_b128 v[{V_IX}:{V_IX+3}], v{V_IDX} offset:{L_IDX+64}')
    e(f'v_add_u32 v{V_POSR}, v{V_POSR}, v{V_G8}')
    e(f'ds_read_b64 v[{V_AOP}:{V_AOP+1}], v{V_POSR}')
    e(f'ds_read_b32 v{V_POSR}, v{V_EA} offset:{L_POS+64}')
    e(f's_mul_i32 s6, s{S_BK}, {BN}')
    e(f's_sub_u32 s6, {N}, s6')
    e(f's_min_u32 s6, s6, {BN}')
    e('s_add_u32 s6, s6, 3')
    e('s_lshr_b32 s6, s6, 2')
    e(f's_mov_b32 s{S_LEFT}, 0')
    e(f's_cmp_lt_u32 s{S_W}, s6'); e(f's_addc_u32 s{S_LEFT}, s{S_LEFT}, 0')
    e(f's_sub_u32 s7, 31, s{S_W}'); e('s_cmp_lt_u32 s7, s6'); e(f's_addc_u32 s{S_LEFT}, s{S_LEFT}, 0')
    e(f's_add_u32 s7, s{S_W}, 32'); e('s_cmp_lt_u32 s7, s6'); e(f's_addc_u32 s{S_LEFT}, s{S_LEFT}, 0')
    if 'benchloop' in EXP:
        e(f's_mov_b32 s{S_NP}, 400'); e(f's_mov_b32 s{S_LEFT}, 1'); e(f's_mov_b32 s{S_RT}, 100000')
    e('s_branch K2_NTSA')
    e.c('---- main loop')
    for X,tag in ((0,'A'),(1,'B')):
        e.lab(f'K2_LOOP{tag}')
        e(f's_cmp_gt_i32 s{S_REM}, 0')
        e(f's_cbranch_scc1 K2_GO{tag}')
        next_task(e, tag)
        e.lab(f'K2_GO{tag}')
        if PRIO:
            e(f's_sub_u32 s{S_RT}, s{S_RT}, 1')
            e(f's_cmp_ge_u32 s{S_RT}, PT[0]'.replace('PT[0]',str(PT[0]))); e(f's_cbranch_scc1 K2_P3{tag}')
            e(f's_cmp_ge_u32 s{S_RT}, PT[1]'.replace('PT[1]',str(PT[1]))); e(f's_cbranch_scc1 K2_P2{tag}')
            e(f's_cmp_ge_u32 s{S_RT}, PT[2]'.replace('PT[2]',str(PT[2]))); e(f's_cbranch_scc1 K2_P1{tag}')
            e('s_setprio 0'); e(f's_branch K2_PD{tag}')
            e.lab(f'K2_P3{tag}'); e('s_setprio 3'); e(f's_branch K2_PD{tag}')
            e.lab(f'K2_P2{tag}'); e('s_setprio 2'); e(f's_branch K2_PD{tag}')
            e.lab(f'K2_P1{tag}'); e('s_setprio 1')
            e.lab(f'K2_PD{tag}')
        e(f's_cmp_eq_u32 s{S_REM}, 1')
        e(f's_cbranch_scc1 K2_HALF{tag}')
        step(e, X, False, tag)
        e(f's_branch K2_AFT{tag}')
        e.lab(f'K2_HALF{tag}')
        step(e, X, True, tag)
        e.lab(f'K2_AFT{tag}')
        e(f's_sub_i32 s{S_REM}, s{S_REM}, 2')
    e('s_branch K2_LOOPA')
    e.lab('K2_SLOW')
    e.c('TODO slow path')
    e('s_branch K2_END2')
    e.lab('K2_END')
    if DIAG:
        e('s_waitcnt vmcnt(0)')
        ST.stamp(e,'end',vreg=1); ST.stamp(e,'real1',real=True,vreg=1)
        ST.flush(e,'s74','s75',f's{S_W}',65,76,(nflushed,24),vreg=1)
    e.lab('K2_END2')
    e('s_endpgm')
```

```python
import sys
from common import *
import k1, k2
NAME='standalone__edge_featured_mpnn_gatedgcn__graph'
def build(only=None,diag=False):
    k1.DIAG=diag; k2.DIAG=diag
    hdr=open('cdna_kernels/'+NAME+'.s.ref').read().split('\n')
    head=[l for l in hdr if l.startswith(';') and '@launch' not in l and 'Override launch' not in l and 'grid=ceil' not in l]
    e=Em()
    for l in head: e.raw(l)
    e.raw(f'; @launch kernel=k1_kernel grid=(256,1,1) block=(512,1,1) lds={k1.K1_LDS}')
    if only!='k1':
        e.raw(f'; @launch kernel={NAME}_kernel grid=(256,1,1) block=(1024,1,1) lds={k2.K2_LDS}')
    e.raw('.amdgcn_target "amdgcn-amd-amdhsa--gfx950"')
    e.raw('.text')
    k1.gen_k1(e,'k1_kernel')
    k2.gen_k2(e,NAME+'_kernel')
    e.raw('.section .rodata,"a"')
    e.raw(kdesc('k1_kernel',256,102 if diag else 64))
    e.raw(kdesc(NAME+'_kernel',128,102))
    return e.text()
if __name__=='__main__':
    out=sys.argv[1] if len(sys.argv)>1 else 'cdna_kernels/'+NAME+'.s'
    only=sys.argv[2] if len(sys.argv)>2 else None
    diag = only=='diag'
    if diag: only=None
    open(out,'w').write(build(only,diag))
    if diag:
        import json; json.dump({'g':k1.STG.names,'s':k1.STS.names,'k2':k2.ST.names},open('stamps.json','w'))
    print('wrote',out)
```
